```python
import torch

def _softmax(x, axis=-1):
    return torch.softmax(x, dim=axis)
def _gelu(x):
    return torch.nn.functional.gelu(x, approximate="tanh")
def _silu(x):
    return torch.nn.functional.silu(x)
def _sigmoid(x):
    return torch.sigmoid(x)
def _layernorm(x, axis=-1, eps=1e-5):
    m = x.mean(dim=axis, keepdim=True)
    v = x.var(dim=axis, keepdim=True, unbiased=False)
    return (x - m) / torch.sqrt(v + eps)
def _scatter_add(tgt, idx, src, axis=0):
    return tgt.clone().index_add_(axis, idx, src)
def _segment_sum(src, seg, n):
    out = torch.zeros((n,) + src.shape[1:], dtype=src.dtype)
    return out.index_add_(0, seg, src)
def _pad(x, pw):
    flat = tuple(v for pair in reversed(pw) for v in pair)
    return torch.nn.functional.pad(x, flat)

kernel_name = 'sequential_preLN__mha_block_cached__glu_gated_geglu__decode'

def setup_inputs():

    _w = (lambda a: (lambda t: t.to(torch.bfloat16) if t.is_floating_point() else t)(torch.as_tensor(a)))
    def _A_setup():
        B, Sq, D = 1, 1, 576
        H, Sk, Dh = 32, 16384, 128
        return {
            "x": _w((lambda *s: torch.randn(*s, dtype=torch.bfloat16) * 0.05)(B, Sq, D)),
            "k_cache": _w((lambda *s: torch.randn(*s, dtype=torch.bfloat16) * 3.2)(B, H, Sk, Dh)),
            "v_cache": _w((lambda *s: torch.randn(*s, dtype=torch.bfloat16) * 1.6)(B, H, Sk, Dh)),
            "wq": _w((lambda *s: torch.randn(*s, dtype=torch.bfloat16) * 3.2)(D, H * Dh) * (D ** -0.5)),
            "wo": _w((lambda *s: torch.randn(*s, dtype=torch.bfloat16) * 1.6)(H * Dh, D) * ((H * Dh) ** -0.5)),
        }
    _A_in = _A_setup()

    def _B_setup():
        B, S, Dm, Df = 1, 1, 576, 4608
        return {
            "x": _w((lambda *s: torch.randn(*s, dtype=torch.bfloat16) * 0.05)(B, S, Dm)),
            "w_gate": _w((lambda *s: torch.randn(*s, dtype=torch.bfloat16) * 1.6)(Dm, Df) * (Dm ** -0.5)),
            "w_up": _w((lambda *s: torch.randn(*s, dtype=torch.bfloat16) * 1.6)(Dm, Df) * (Dm ** -0.5)),
            "w_down": _w((lambda *s: torch.randn(*s, dtype=torch.bfloat16) * 1.6)(Df, Dm) * (Df ** -0.5)),
        }
    _B_in = _B_setup()

    return {
        "A_x": _A_in["x"],
        "A_k_cache": _A_in["k_cache"],
        "A_v_cache": _A_in["v_cache"],
        "A_wq": _A_in["wq"],
        "A_wo": _A_in["wo"],
        "B_x": _B_in["x"],
        "B_w_gate": _B_in["w_gate"],
        "B_w_up": _B_in["w_up"],
        "B_w_down": _B_in["w_down"],
    }

def reference(A_x, A_k_cache, A_v_cache, A_wq, A_wo, B_x, B_w_gate, B_w_up, B_w_down):
    def _A_ref(x, k_cache, v_cache, wq, wo):
        B, Sq, D = x.shape
        H, Dh = 32, 128
        q = (lambda x, *d: x.permute(*d))((x @ wq).reshape(B, Sq, H, Dh), 0, 2, 1, 3)
        scores = torch.einsum("bhqd,bhkd->bhqk", q, k_cache) * (Dh ** -0.5)
        p = _softmax(scores, axis=-1)
        o = torch.einsum("bhqk,bhkd->bhqd", p, v_cache)
        return (lambda x, *d: x.permute(*d))(o, 0, 2, 1, 3).reshape(B, Sq, H * Dh) @ wo

    def _B_ref(x, w_gate, w_up, w_down):
        g = torch.einsum("bsd,df->bsf", x, w_gate)
        u = torch.einsum("bsd,df->bsf", x, w_up)
        h = _gelu(g) * u
        return torch.einsum("bsf,fd->bsd", h, w_down)

    x = A_x
    h = x + _A_ref(_layernorm(x, axis=-1), A_k_cache, A_v_cache, A_wq, A_wo)
    h2 = h + _B_ref(_layernorm(h, axis=-1), B_w_gate, B_w_up, B_w_down)
    return h2
```

```python
import re

TRANS = ("v_exp_f32", "v_log_f32", "v_rcp_f32", "v_rsq_f32", "v_sqrt_f32", "v_sin_f32", "v_cos_f32",
         "v_rcp_iflag_f32")

def regs_of(op):
    op = op.strip()
    op = re.sub(r"^-", "", op)
    m = re.fullmatch(r"(?:abs\()?([vsa])(\d+)\)?", op)
    if m:
        return [m.group(1) + m.group(2)]
    m = re.fullmatch(r"([vsa])\[(\d+):(\d+)\]", op)
    if m:
        return [m.group(1) + str(k) for k in range(int(m.group(2)), int(m.group(3)) + 1)]
    if op in ("vcc", "vcc_lo", "vcc_hi"):
        return ["vcc"]
    if op in ("exec", "exec_lo", "exec_hi"):
        return ["exec"]
    if op == "m0":
        return ["m0"]
    return []

class Ins:
    pass

def split_ops(s):
    out, depth, cur = [], 0, ""
    for ch in s:
        if ch == "[":
            depth += 1
        if ch == "]":
            depth -= 1
        if ch == "," and depth == 0:
            out.append(cur.strip()); cur = ""
        else:
            cur += ch
    if cur.strip():
        out.append(cur.strip())
    return out

def analyze(text):
    t = text.split(";")[0].strip()
    parts = t.split(None, 1)
    mn = parts[0]
    rest = parts[1] if len(parts) > 1 else ""
    ops = split_ops(rest)
    mods = ""
    if ops:
        sp = ops[-1].split(None, 1)
        ops[-1] = sp[0]
        mods = sp[1] if len(sp) > 1 else ""
    I = Ins()
    I.text, I.mn, I.ops, I.mods = text, mn, ops, mods
    base = re.sub(r"_(e32|e64|dpp|sdwa)$", "", mn)
    I.base = base
    I.valu = mn.startswith("v_") and not mn.startswith("v_mfma")
    I.mfma = mn.startswith("v_mfma")
    I.salu = mn.startswith("s_")
    I.vmem = mn.startswith(("buffer_", "global_", "flat_"))
    I.ds = mn.startswith("ds_")
    I.dpp = mn.endswith("_dpp") or bool(re.search(r"\b(quad_perm|row_|wave_)", mods))
    I.trans = base in TRANS
    I.dot = base.startswith("v_dot")
    I.perml = base.startswith("v_permlane")
    I.rdlane = base in ("v_readlane_b32", "v_readfirstlane_b32")
    W, R = [], []
    allr = [regs_of(o) for o in ops]
    if I.valu or I.mfma:
        if base in ("v_nop",):
            pass
        elif I.perml:
            W = allr[0] + allr[1]; R = allr[0] + allr[1]
        elif base.startswith("v_cmp"):
            W = allr[0]; R = sum(allr[1:], [])
            if base.startswith("v_cmpx"): W = W + ["exec"]
        elif base in ("v_add_co_u32", "v_sub_co_u32", "v_subrev_co_u32", "v_addc_co_u32", "v_subb_co_u32", "v_div_scale_f32", "v_mad_u64_u32"):
            W = allr[0] + allr[1]; R = sum(allr[2:], [])
        else:
            W = allr[0]; R = sum(allr[1:], [])
            if base in ("v_fmac_f32", "v_dot2c_f32_bf16", "v_pk_fmac_f16", "v_writelane_b32") or I.dpp or "sdwa" in mn:
                R = R + allr[0]
            if base == "v_div_fmas_f32": R = R + ["vcc"]
    elif I.vmem:
        if "_lds_" in mn or re.search(r"\blds\b", mods):
            R = sum(allr, []) + ["m0"]
        elif "store" in mn:
            R = sum(allr, [])
        elif "atomic" in mn:
            R = sum(allr, [])
            if re.search(r"\bsc0\b", mods): W = allr[0]
        elif mn.startswith(("buffer_wbl2", "buffer_inv")):
            pass
        else:
            W = allr[0]; R = sum(allr[1:], [])
    elif I.ds:
        if mn.startswith(("ds_write", "ds_add_f32", "ds_add_u32")) :
            R = sum(allr, [])
        else:
            W = allr[0]; R = sum(allr[1:], [])
            if "d16" in mn: R = R + allr[0]
    elif I.salu:
        if mn.startswith(("s_cmp", "s_cbranch", "s_branch", "s_waitcnt", "s_nop", "s_barrier", "s_endpgm", "s_sleep", "s_setprio", "s_bitcmp")):
            R = sum(allr, [])
        else:
            if allr:
                W = allr[0]; R = sum(allr[1:], [])
            if "saveexec" in mn: W = W + ["exec"]; R = R + ["exec"]
    I.W, I.R = set(W), set(R)
    I.widestore = I.vmem and ("store" in mn) and mn.endswith(("x3", "x4"))
    if I.widestore:
        I.sdata = set(allr[0]) if mn.startswith("buffer_") else set(allr[1])
    m = re.search(r"_(\d+)x(\d+)x(\d+)", mn) if I.mfma else None
    I.passes = 0
    if I.mfma:
        I.passes = 8 if mn.startswith("v_mfma_f32_32x32x16") else 4 if mn.startswith("v_mfma_f32_16x16x32") else 16
        I.srcC = set(allr[3]); I.srcAB = set(allr[1] + allr[2])
    if I.dot:
        if base == "v_dot2c_f32_bf16":
            I.srcC = set(allr[0]); I.srcAB = set(allr[1] + allr[2])
        else:
            I.srcC = set(allr[3]); I.srcAB = set(allr[1] + allr[2])
    return I

def need(P, C):
    n = 0
    vW = {r for r in P.W if r[0] in "va"}
    sW = {r for r in P.W if r[0] == "s" or r == "vcc"}
    if P.valu:
        if C.dpp and (vW & C.R): n = max(n, 2)
        if C.dpp and "exec" in P.W: n = max(n, 5)
        if P.trans and (vW & C.R) : n = max(n, 1)
        if P.dot:
            if C.dot and C.base == P.base:
                if vW & C.srcAB: n = max(n, 3)
            elif vW & (C.R | C.W): n = max(n, 3)
        if C.rdlane and (vW & C.R): n = max(n, 1)
        if C.perml and (vW & C.R): n = max(n, 2)
        if C.mfma and (vW & C.R): n = max(n, 2)
        if sW:
            if (C.valu or C.mfma) and (sW & C.R):
                n = max(n, 4 if (C.base in ("v_readlane_b32", "v_writelane_b32", "v_div_fmas_f32")) else 2)
            if C.vmem and (sW & C.R): n = max(n, 5)
        if "exec" in P.W:
            if C.rdlane or C.perml or C.mfma or C.base == "v_writelane_b32": n = max(n, 4)
            if C.valu and "exec" in C.R: n = max(n, 2)
        if "sdwa" in P.mn and (vW & (C.R | C.W)) and (C.valu): n = max(n, 1)
    if P.salu and "m0" in P.W and "m0" in C.R: n = max(n, 1)
    if P.widestore:
        if P.sdata & C.W: n = max(n, 2 if C.valu else 1)
    if P.mfma:
        p = P.passes
        tbl = {2: 0, 4: 1, 8: 2, 16: 3}[p]
        if C.mfma:
            if vW & C.srcAB: n = max(n, [5, 8, 12, 20][tbl])
            if vW & C.srcC:
                if C.srcC == vW and C.passes == p: n = max(n, [2, 0, 0, 0][tbl])
                else: n = max(n, [4, 6, 10, 18][tbl])
            elif vW & C.W: n = max(n, [4, 6, 10, 18][tbl])
        else:
            if vW & (C.R | C.W): n = max(n, [5, 8, 12, 20][tbl])
            if C.valu and (P.srcC & C.W): n = max(n, [1, 3, 7, 15][tbl])
    return n

MAXWIN = 20

class Asm:
    def __init__(self):
        self.out = []
        self.hist = []
        self.nops = 0

    def raw(self, s):
        self.out.append(s)

    def c(self, s):
        self.out.append("    ; " + s)

    def _advance(self, k):
        self.hist = [(p, d + k) for (p, d) in self.hist if d + k < MAXWIN]

    def _pad(self, n):
        while n > 0:
            k = min(n, 16)
            self.out.append(f"    s_nop {k-1}")
            self._advance(k)
            self.nops += 1
            n -= k

    def flush(self):
        worst = 0
        for (p, d) in self.hist:
            w = 0
            if p.valu:
                w = 2
                if p.dot: w = 3
                if any(r[0] == "s" or r in ("vcc", "exec") for r in p.W): w = 5
            if p.mfma: w = [5, 8, 12, 20][{2: 0, 4: 1, 8: 2, 16: 3}[p.passes]]
            if p.widestore: w = max(w, 2)
            if p.salu and "m0" in p.W: w = max(w, 1)
            worst = max(worst, w - d)
        self._pad(worst)
        self.hist = []

    def label(self, name):
        self.flush()
        self.out.append(f"{name}:")

    def i(self, text):
        I = analyze(text)
        if I.mn.startswith(("s_cbranch", "s_branch")):
            worst = 0
            self.flush_before_branch()
            self.out.append("    " + text)
            self._advance(1)
            return
        n = 0
        for (p, d) in self.hist:
            n = max(n, need(p, I) - d)
        self._pad(n)
        self.out.append("    " + text)
        k = 1
        if I.mn == "s_nop":
            k = int(I.ops[0], 0) + 1
        self._advance(k)
        self.hist.append((I, 0))

    def flush_before_branch(self):
        self.flush()

    def text(self):
        return "\n".join(self.out) + "\n"
```

```python
import sys
from asmlib import Asm

NAME = "sequential_preLN__mha_block_cached__glu_gated_geglu__decode"
HEADER = open("cdna_kernels/" + NAME + ".s.ref").read().split("; Override launch")[0]

LOG2E = 0x3fb8aa3b
SCALE = 0x3db504f3
EPS = 0x3727c5ac
INV576 = 0x3ae38e39

WS_PART = 0
WS_YO = 0x40000
WS_H = 0x100000
WS_YD = 0x110000
WS_SIZE = 0x200000

def kernel_begin(a, name):
    a.raw(".text")
    a.raw(f".globl {name}")
    a.raw(".p2align 8")
    a.raw(f".type {name},@function")
    a.raw(f"{name}:")

def kernel_desc(name, vgpr, sgpr=102):
    acc = (vgpr + 3) // 4 * 4
    return f""".section .rodata,"a"
.p2align 6
.amdhsa_kernel {name}
  .amdhsa_next_free_vgpr {vgpr}
  .amdhsa_next_free_sgpr {sgpr}
  .amdhsa_accum_offset {acc}
  .amdhsa_group_segment_fixed_size 0
  .amdhsa_kernarg_size 96
  .amdhsa_user_sgpr_count 2
  .amdhsa_user_sgpr_kernarg_segment_ptr 1
  .amdhsa_system_sgpr_workgroup_id_x 1
  .amdhsa_float_denorm_mode_32 3
  .amdhsa_float_denorm_mode_16_64 3
.end_amdhsa_kernel
"""

def srd(a, d, lo, hi, nrec):
    if d != lo:
        a.i(f"s_mov_b32 s{d}, s{lo}")
    a.i(f"s_and_b32 s{d+1}, s{hi}, 0xffff")
    a.i(f"s_mov_b32 s{d+2}, {nrec:#x}")
    a.i(f"s_mov_b32 s{d+3}, 0x20000")

def wave_sum(a, v, t0, t1):
    a.i(f"v_add_f32_dpp v{v}, v{v}, v{v} quad_perm:[1,0,3,2] row_mask:0xf bank_mask:0xf")
    a.i(f"v_add_f32_dpp v{v}, v{v}, v{v} quad_perm:[2,3,0,1] row_mask:0xf bank_mask:0xf")
    a.i(f"v_add_f32_dpp v{v}, v{v}, v{v} row_half_mirror row_mask:0xf bank_mask:0xf")
    a.i(f"v_add_f32_dpp v{v}, v{v}, v{v} row_mirror row_mask:0xf bank_mask:0xf")
    rows_op(a, "v_add_f32", v, t0)

def rows_op(a, op, v, t0):
    a.i(f"v_mov_b32 v{t0}, v{v}")
    a.i(f"v_permlane32_swap_b32 v{v}, v{t0}")
    a.i(f"{op} v{v}, v{v}, v{t0}")
    a.i(f"v_mov_b32 v{t0}, v{v}")
    a.i(f"v_permlane16_swap_b32 v{v}, v{t0}")
    a.i(f"{op} v{v}, v{v}, v{t0}")

def bf16_round(a, v):
    a.i(f"v_cvt_pk_bf16_f32 v{v}, v{v}, v{v}")
    a.i(f"v_and_b32 v{v}, 0xffff0000, v{v}")

def layernorm(a, xs, valid_mask_last, t0, t1, t2, t3):
    a.i(f"v_add_f32 v{t0}, v{xs[0]}, v{xs[1]}")
    for x in xs[2:]:
        a.i(f"v_add_f32 v{t0}, v{t0}, v{x}")
    wave_sum(a, t0, t1, t2)
    a.i(f"v_mul_f32 v{t0}, {INV576:#x}, v{t0}")
    a.i(f"v_mov_b32 v{t2}, 0")
    for x in xs:
        a.i(f"v_sub_f32 v{t1}, v{x}, v{t0}")
        if x in valid_mask_last:
            a.i(f"v_cndmask_b32 v{t1}, 0, v{t1}, s[40:41]")
        a.i(f"v_fmac_f32 v{t2}, v{t1}, v{t1}")
    wave_sum(a, t2, t1, t3)
    a.i(f"v_mul_f32 v{t2}, {INV576:#x}, v{t2}")
    bf16_round(a, t0)
    bf16_round(a, t2)
    a.i(f"v_add_f32 v{t2}, {EPS:#x}, v{t2}")
    bf16_round(a, t2)
    a.i(f"v_sqrt_f32 v{t2}, v{t2}")
    bf16_round(a, t2)
    a.i(f"v_rcp_f32 v{t2}, v{t2}")
    for x in xs:
        a.i(f"v_sub_f32 v{x}, v{x}, v{t0}")
        bf16_round(a, x)
        a.i(f"v_mul_f32 v{x}, v{x}, v{t2}")
        bf16_round(a, x)

def reduce8_rows(a, acc):
    for e in range(4):
        a.i(f"v_permlane32_swap_b32 v{acc[e]}, v{acc[e+4]}")
    for e in range(4):
        a.i(f"v_add_f32 v{acc[e]}, v{acc[e]}, v{acc[e+4]}")
    a.i(f"v_permlane16_swap_b32 v{acc[0]}, v{acc[2]}")
    a.i(f"v_permlane16_swap_b32 v{acc[1]}, v{acc[3]}")
    a.i(f"v_add_f32 v{acc[0]}, v{acc[0]}, v{acc[2]}")
    a.i(f"v_add_f32 v{acc[1]}, v{acc[1]}, v{acc[3]}")
    return acc[0], acc[1]

def gen_attn(a, nt=""):
    name = "attn_kernel"
    kernel_begin(a, name)
    Q = [4, 5, 6, 7]
    O = list(range(8, 16))
    M, L = 16, 17
    A = list(range(18, 26))
    T = list(range(26, 40))
    KB = [40, 72]
    VB = [104, 136]
    WQ = 168
    X = list(range(240, 250))
    sK, sV, sQ, sX, sW = 16, 20, 24, 28, 32
    a.i("s_cmp_ge_u32 s2, 256")
    a.i("s_cbranch_scc1 L_attn_end")
    a.i("s_load_dwordx8 s[4:11], s[0:1], 0")
    a.i("s_load_dwordx2 s[12:13], s[0:1], 88")
    a.i("v_lshrrev_b32 v1, 6, v0")
    a.i("v_and_b32 v2, 63, v0")
    a.i("v_readfirstlane_b32 s3, v1")
    a.i("s_and_b32 s14, s2, 31")
    a.i("s_lshr_b32 s15, s2, 5")
    a.i("s_lshl_b32 s36, s14, 22")
    a.i("s_lshl_b32 s37, s15, 19")
    a.i("s_add_u32 s36, s36, s37")
    a.i("v_cmp_gt_u32 s[40:41], 32, v2")
    a.i("s_waitcnt lgkmcnt(0)")
    srd(a, sX, 4, 5, 1152)
    a.i("v_lshlrev_b32 v3, 2, v2")
    for i in range(5):
        a.i(f"buffer_load_dword v{X[i]}, v3, s[{sX}:{sX+3}], 0 offen offset:{256*i}")
    srd(a, sQ, 10, 11, 576 * 8192)
    a.i("v_lshrrev_b32 v26, 4, v2")
    a.i("v_and_b32 v27, 15, v2")
    a.i("v_mul_u32_u24 v28, 18, v26")
    a.i("s_mul_i32 s38, s3, 72")
    a.i("v_add_u32 v28, s38, v28")
    a.i("v_lshlrev_b32 v29, 13, v28")
    a.i("v_lshl_add_u32 v29, v27, 4, v29")
    a.i("s_lshl_b32 s38, s14, 8")
    for t in range(18):
        a.i(f"buffer_load_dwordx4 v[{WQ+4*t}:{WQ+4*t+3}], v29, s[{sQ}:{sQ+3}], s38 offen")
        if t != 17:
            a.i("s_add_u32 s38, s38, 8192")
    a.i("s_add_u32 s6, s6, s36")
    a.i("s_addc_u32 s7, s7, 0")
    a.i("s_add_u32 s8, s8, s36")
    a.i("s_addc_u32 s9, s9, 0")
    srd(a, sK, 6, 7, 512 * 1024)
    srd(a, sV, 8, 9, 512 * 1024)
    srd(a, sW, 12, 13, WS_SIZE)
    a.i("v_lshlrev_b32 v1, 13, v1")
    a.i("v_lshl_add_u32 v1, v2, 4, v1")
    def loads(buf, srdreg, sA):
        for t in range(8):
            so = sA if t < 4 else sA + 1
            a.i(f"buffer_load_dwordx4 v[{buf+4*t}:{buf+4*t+3}], v1, s[{srdreg}:{srdreg+3}], s{so} offen offset:{(t&3)*1024}{nt}")
    a.i("s_mov_b32 s42, 0")
    a.i("s_mov_b32 s43, 4096")
    a.i("s_mov_b32 s44, 0x10000")
    a.i("s_mov_b32 s45, 0x11000")
    loads(KB[0], sK, 42)
    loads(VB[0], sV, 42)
    loads(KB[1], sK, 44)
    loads(VB[1], sV, 44)
    a.i("s_waitcnt vmcnt(50)")
    xs = []
    for i in range(5):
        a.i(f"v_and_b32 v{X[5+i]}, 0xffff0000, v{X[i]}")
        a.i(f"v_lshlrev_b32 v{X[i]}, 16, v{X[i]}")
    xs = X
    layernorm(a, xs, [X[4], X[9]], T[4], T[5], T[6], T[7])
    for i in range(5):
        a.i(f"v_lshrrev_b32 v{X[i]}, 16, v{X[i]}")
        a.i(f"v_or_b32 v{X[i]}, v{X[i]}, v{X[5+i]}")
        a.i(f"ds_write_b32 v3, v{X[i]} offset:{256*i}")
    a.i("v_lshlrev_b32 v28, 1, v28")
    a.i("s_waitcnt lgkmcnt(0)")
    for i in range(9):
        a.i(f"ds_read_b32 v{X[i]}, v28 offset:{4*i}")
    for e in range(8):
        a.i(f"v_mov_b32 v{O[e]}, 0")
    a.i("s_waitcnt lgkmcnt(0)")
    for t in range(18):
        xr = X[t // 2]
        if t % 2 == 0:
            a.i(f"v_and_b32 v{T[8]}, 0xffff, v{xr}")
            a.i(f"v_lshlrev_b32 v{T[9]}, 16, v{xr}")
        else:
            a.i(f"v_lshrrev_b32 v{T[8]}, 16, v{xr}")
            a.i(f"v_and_b32 v{T[9]}, 0xffff0000, v{xr}")
        a.i(f"s_waitcnt vmcnt({32 + 17 - t})")
        for d in range(4):
            a.i(f"v_dot2c_f32_bf16 v{O[2*d]}, v{WQ+4*t+d}, v{T[8]}")
            a.i(f"v_dot2c_f32_bf16 v{O[2*d+1]}, v{WQ+4*t+d}, v{T[9]}")
    c0, c1 = reduce8_rows(a, O)
    a.i("v_lshlrev_b32 v30, 5, v27")
    a.i("v_lshrrev_b32 v31, 4, v2")
    a.i("v_lshl_add_u32 v30, v31, 3, v30")
    a.i("s_lshl_b32 s38, s3, 9")
    a.i("v_add_u32 v30, s38, v30")
    a.i(f"ds_write_b64 v30, v[{c0}:{c1}] offset:2048")
    a.i("s_waitcnt lgkmcnt(0)")
    a.i("s_barrier")
    a.i("v_lshlrev_b32 v30, 3, v2")
    for w in range(8):
        a.i(f"ds_read_b64 v[{WQ+2*w}:{WQ+2*w+1}], v30 offset:{2048+512*w}")
    a.i("s_waitcnt lgkmcnt(0)")
    for w in range(1, 8):
        a.i(f"v_add_f32 v{WQ}, v{WQ}, v{WQ+2*w}")
        a.i(f"v_add_f32 v{WQ+1}, v{WQ+1}, v{WQ+2*w+1}")
    a.i(f"v_cvt_pk_bf16_f32 v{WQ}, v{WQ}, v{WQ+1}")
    a.i(f"ds_write_b32 v3, v{WQ} offset:8192")
    a.i("v_lshlrev_b32 v30, 4, v27")
    a.i("s_waitcnt lgkmcnt(0)")
    a.i(f"ds_read_b128 v[{Q[0]}:{Q[3]}], v30 offset:8192")
    for e in range(8):
        a.i(f"v_mov_b32 v{O[e]}, 0")
    a.i(f"v_mov_b32 v{M}, 0xff800000")
    a.i(f"v_mov_b32 v{L}, 0")
    a.i("s_mov_b32 s46, 0")
    a.i(f"s_mov_b32 s47, {LOG2E:#x}")
    a.i(f"s_mov_b32 s48, {SCALE:#x}")
    a.i("s_mov_b32 s49, 0xffff0000")
    a.i("s_waitcnt lgkmcnt(0)")
    a.label("L_attn_loop")
    for b in range(2):
        kb, vb = KB[b], VB[b]
        sA = 42 + 2 * b
        a.i("s_waitcnt vmcnt(24)")
        for d in range(4):
            for t in range(8):
                if d == 0:
                    a.i(f"v_dot2_f32_bf16 v{A[t]}, v{kb+4*t}, v{Q[0]}, 0")
                else:
                    a.i(f"v_dot2_f32_bf16 v{A[t]}, v{kb+4*t+d}, v{Q[d]}, v{A[t]}")
        a.i(f"s_add_u32 s{sA}, s{sA}, 0x20000")
        a.i(f"s_add_u32 s{sA+1}, s{sA+1}, 0x20000")
        loads(kb, sK, sA)
        for t in range(4):
            a.i(f"v_add_f32_dpp v{A[t]}, v{A[t]}, v{A[t]} row_mirror row_mask:0xf bank_mask:0x3")
        for t in range(4):
            a.i(f"v_add_f32_dpp v{A[t]}, v{A[t+4]}, v{A[t+4]} row_mirror row_mask:0xf bank_mask:0xc")
        for u in range(2):
            a.i(f"v_add_f32_dpp v{A[u]}, v{A[u]}, v{A[u]} row_half_mirror row_mask:0xf bank_mask:0x5")
        for u in range(2):
            a.i(f"v_add_f32_dpp v{A[u]}, v{A[u+2]}, v{A[u+2]} row_half_mirror row_mask:0xf bank_mask:0xa")
        for u in range(2):
            a.i(f"v_add_f32_dpp v{A[u]}, v{A[u]}, v{A[u]} quad_perm:[1,0,3,2] row_mask:0xf bank_mask:0xf")
        for u in range(2):
            a.i(f"v_add_f32_dpp v{A[u]}, v{A[u]}, v{A[u]} quad_perm:[2,3,0,1] row_mask:0xf bank_mask:0xf")
        S0, S1 = A[0], A[1]
        t0, t1, t2 = A[2], A[3], A[4]
        a.i(f"v_cvt_pk_bf16_f32 v{t0}, v{S0}, v{S1}")
        a.i(f"v_lshlrev_b32 v{S0}, 16, v{t0}")
        a.i(f"v_and_b32 v{S1}, s49, v{t0}")
        a.i(f"v_mul_f32 v{S0}, s48, v{S0}")
        a.i(f"v_mul_f32 v{S1}, s48, v{S1}")
        a.i(f"v_cvt_pk_bf16_f32 v{t0}, v{S0}, v{S1}")
        a.i(f"v_lshlrev_b32 v{S0}, 16, v{t0}")
        a.i(f"v_and_b32 v{S1}, s49, v{t0}")
        a.i(f"v_max3_f32 v{t0}, v{S0}, v{S1}, v{M}")
        a.i(f"v_max_f32_dpp v{t0}, v{t0}, v{t0} row_half_mirror row_mask:0xf bank_mask:0xf")
        a.i(f"v_max_f32_dpp v{t0}, v{t0}, v{t0} row_mirror row_mask:0xf bank_mask:0xf")
        a.i(f"v_sub_f32 v{t1}, v{M}, v{t0}")
        a.i(f"v_sub_f32 v{S0}, v{S0}, v{t0}")
        a.i(f"v_sub_f32 v{S1}, v{S1}, v{t0}")
        a.i(f"v_mov_b32 v{M}, v{t0}")
        a.i(f"v_mul_f32 v{t1}, s47, v{t1}")
        a.i(f"v_mul_f32 v{S0}, s47, v{S0}")
        a.i(f"v_mul_f32 v{S1}, s47, v{S1}")
        a.i(f"v_exp_f32 v{t1}, v{t1}")
        a.i(f"v_exp_f32 v{S0}, v{S0}")
        a.i(f"v_exp_f32 v{S1}, v{S1}")
        a.i(f"v_fma_f32 v{L}, v{L}, v{t1}, v{S0}")
        for e in range(8):
            a.i(f"v_mul_f32 v{O[e]}, v{O[e]}, v{t1}")
        a.i(f"v_add_f32 v{L}, v{L}, v{S1}")
        a.i("s_waitcnt vmcnt(24)")
        for t in range(8):
            P = A[t & 1]
            bank = t >> 1
            for d in range(4):
                a.i(f"v_lshlrev_b32 v{T[2*d]}, 16, v{vb+4*t+d}")
                a.i(f"v_and_b32 v{T[2*d+1]}, s49, v{vb+4*t+d}")
            for e in range(8):
                a.i(f"v_fmac_f32_dpp v{O[e]}, v{P}, v{T[e]} row_newbcast:{4*bank} row_mask:0xf bank_mask:0xf")
        loads(vb, sV, sA)
    a.i("s_add_u32 s46, s46, 1")
    a.i("s_cmp_lt_u32 s46, 4")
    a.i("s_cbranch_scc1 L_attn_loop")
    a.i(f"v_add_f32_dpp v{L}, v{L}, v{L} row_half_mirror row_mask:0xf bank_mask:0xf")
    a.i(f"v_add_f32_dpp v{L}, v{L}, v{L} row_mirror row_mask:0xf bank_mask:0xf")
    a.i(f"v_mov_b32 v{A[0]}, v{M}")
    rows_op(a, "v_max_f32", A[0], A[1])
    a.i(f"v_sub_f32 v{A[2]}, v{M}, v{A[0]}")
    a.i(f"v_mul_f32 v{A[2]}, s47, v{A[2]}")
    a.i(f"v_exp_f32 v{A[2]}, v{A[2]}")
    a.i(f"v_mul_f32 v{L}, v{L}, v{A[2]}")
    for e in range(8):
        a.i(f"v_mul_f32 v{O[e]}, v{O[e]}, v{A[2]}")
    rows_op(a, "v_add_f32", L, A[1])
    c0, c1 = reduce8_rows(a, O)
    a.i("v_and_b32 v27, 15, v2")
    a.i("v_lshlrev_b32 v30, 5, v27")
    a.i("v_lshrrev_b32 v31, 4, v2")
    a.i("v_lshl_add_u32 v30, v31, 3, v30")
    a.i("s_lshl_b32 s38, s3, 9")
    a.i("v_add_u32 v30, s38, v30")
    a.i(f"ds_write_b64 v30, v[{c0}:{c1}] offset:12288")
    a.i(f"v_mov_b32 v{A[1]}, v{L}")
    a.i("s_lshl_b32 s38, s3, 3")
    a.i("v_mov_b32 v30, s38")
    a.i(f"ds_write_b64 v30, v[{A[0]}:{A[1]}] offset:16384")
    a.i("s_waitcnt lgkmcnt(0)")
    a.i("s_barrier")
    a.i("s_cmp_lg_u32 s3, 0")
    a.i("s_cbranch_scc1 L_attn_end")
    a.i("v_mov_b32 v30, 0")
    for k in range(4):
        a.i(f"ds_read_b128 v[{40+4*k}:{43+4*k}], v30 offset:{16384+16*k}")
    a.i("v_lshlrev_b32 v30, 3, v2")
    for w in range(8):
        a.i(f"ds_read_b64 v[{56+2*w}:{57+2*w}], v30 offset:{12288+512*w}")
    a.i("s_waitcnt lgkmcnt(0)")
    a.i("v_max3_f32 v26, v40, v42, v44")
    a.i("v_max3_f32 v26, v26, v46, v48")
    a.i("v_max3_f32 v26, v26, v50, v52")
    a.i("v_max_f32 v26, v26, v54")
    a.i("v_mov_b32 v27, 0")
    a.i("v_mov_b32 v28, 0")
    a.i("v_mov_b32 v29, 0")
    for w in range(8):
        a.i(f"v_sub_f32 v31, v{40+2*w}, v26")
        a.i("v_mul_f32 v31, s47, v31")
        a.i("v_exp_f32 v31, v31")
        a.i(f"v_fmac_f32 v27, v31, v{41+2*w}")
        a.i(f"v_fmac_f32 v28, v31, v{56+2*w}")
        a.i(f"v_fmac_f32 v29, v31, v{57+2*w}")
    a.i("s_lshl_b32 s38, s2, 10")
    a.i(f"buffer_store_dwordx2 v[28:29], v30, s[{sW}:{sW+3}], s38 offen")
    a.i("v_mov_b32 v30, 512")
    a.i(f"buffer_store_dwordx2 v[26:27], v30, s[{sW}:{sW+3}], s38 offen")
    a.label("L_attn_end")
    a.i("s_endpgm")
    return name, 250

def gen_oproj(a):
    name = "oproj_kernel"
    kernel_begin(a, name)
    sO, sW = 16, 20
    W = 32
    a.i("s_cmp_ge_u32 s2, 256")
    a.i("s_cbranch_scc1 L_oproj_end")
    a.i("s_load_dwordx2 s[4:5], s[0:1], 32")
    a.i("s_load_dwordx2 s[12:13], s[0:1], 88")
    a.i("v_lshrrev_b32 v1, 6, v0")
    a.i("v_and_b32 v2, 63, v0")
    a.i("v_readfirstlane_b32 s3, v1")
    a.i("s_and_b32 s14, s2, 31")
    a.i("s_lshr_b32 s15, s2, 5")
    a.i(f"s_mov_b32 s47, {LOG2E:#x}")
    a.i("s_waitcnt lgkmcnt(0)")
    srd(a, sO, 4, 5, 4096 * 1152)
    srd(a, sW, 12, 13, WS_SIZE)
    a.i("s_lshl_b32 s36, s14, 7")
    a.i("s_lshl_b32 s37, s15, 4")
    a.i("s_add_u32 s36, s36, s37")
    a.i("s_mul_i32 s36, s36, 1152")
    a.i("v_lshlrev_b32 v3, 2, v0")
    a.i("v_mov_b32 v4, 0x7fffff00")
    a.i("v_cmp_gt_u32 vcc, 288, v0")
    a.i("v_cndmask_b32 v4, v4, v3, vcc")
    for e in range(16):
        a.i(f"buffer_load_dword v{W+e}, v4, s[{sO}:{sO+3}], s36 offen")
        if e != 15:
            a.i("s_add_u32 s36, s36, 1152")
    a.i("s_cmp_lg_u32 s3, 0")
    a.i("s_cbranch_scc1 L_oproj_wait")
    a.i("v_lshrrev_b32 v5, 4, v2")
    a.i("v_and_b32 v6, 15, v2")
    a.i("v_lshlrev_b32 v7, 15, v5")
    a.i("s_lshl_b32 s38, s14, 10")
    a.i("v_add_u32 v7, s38, v7")
    a.i("v_add_u32 v8, 0x20000, v7")
    a.i(f"buffer_load_dwordx2 v[10:11], v7, s[{sW}:{sW+3}], 0 offen offset:512")
    a.i(f"buffer_load_dwordx2 v[12:13], v8, s[{sW}:{sW+3}], 0 offen offset:512")
    a.i("s_lshl_b32 s38, s15, 6")
    a.i("v_lshl_add_u32 v7, v6, 2, v7")
    a.i("v_lshl_add_u32 v8, v6, 2, v8")
    a.i(f"buffer_load_dword v14, v7, s[{sW}:{sW+3}], s38 offen")
    a.i(f"buffer_load_dword v15, v8, s[{sW}:{sW+3}], s38 offen")
    a.i("s_waitcnt vmcnt(0)")
    a.i("v_max_f32 v16, v10, v12")
    rows_op(a, "v_max_f32", 16, 17)
    a.i("v_sub_f32 v10, v10, v16")
    a.i("v_sub_f32 v12, v12, v16")
    a.i("v_mul_f32 v10, s47, v10")
    a.i("v_mul_f32 v12, s47, v12")
    a.i("v_exp_f32 v10, v10")
    a.i("v_exp_f32 v12, v12")
    a.i("v_mul_f32 v11, v10, v11")
    a.i("v_fmac_f32 v11, v12, v13")
    a.i("v_mul_f32 v14, v10, v14")
    a.i("v_fmac_f32 v14, v12, v15")
    rows_op(a, "v_add_f32", 11, 17)
    rows_op(a, "v_add_f32", 14, 17)
    a.i("v_rcp_f32 v11, v11")
    a.i("v_mul_f32 v14, v14, v11")
    a.i("v_cvt_pk_bf16_f32 v14, v14, v14")
    a.i("v_and_b32 v15, 0xffff0000, v14")
    a.i("v_and_b32 v14, 0xffff, v14")
    a.i("v_lshlrev_b32 v6, 2, v6")
    a.i("ds_write_b32 v6, v14")
    a.i("ds_write_b32 v6, v15 offset:64")
    a.i("s_waitcnt lgkmcnt(0)")
    a.label("L_oproj_wait")
    a.i("s_barrier")
    a.i("v_mov_b32 v5, 0")
    for k in range(8):
        a.i(f"ds_read_b128 v[{48+4*k}:{51+4*k}], v5 offset:{16*k}")
    a.i("v_mov_b32 v10, 0")
    a.i("v_mov_b32 v11, 0")
    a.i("s_waitcnt vmcnt(0) lgkmcnt(0)")
    for e in range(16):
        a.i(f"v_dot2c_f32_bf16 v10, v{W+e}, v{48+e}")
        a.i(f"v_dot2c_f32_bf16 v11, v{W+e}, v{64+e}")
    a.i("s_mul_i32 s38, s2, 2304")
    a.i(f"s_add_u32 s38, s38, {WS_YO:#x}")
    a.i("v_lshlrev_b32 v3, 3, v0")
    a.i("v_mov_b32 v4, 0x7fffff00")
    a.i("v_cndmask_b32 v4, v4, v3, vcc")
    a.i(f"buffer_store_dwordx2 v[10:11], v4, s[{sW}:{sW+3}], s38 offen")
    a.label("L_oproj_end")
    a.i("s_endpgm")
    return name, 80

def gen_reduce(a, name, nparts, src_off, final):
    kernel_begin(a, name)
    sW, sX, sOut = 16, 20, 24
    per = nparts // 4
    a.i("s_cmp_ge_u32 s2, 9")
    a.i(f"s_cbranch_scc1 L_{name}_end")
    a.i("s_load_dwordx2 s[4:5], s[0:1], 0")
    a.i("s_load_dwordx2 s[6:7], s[0:1], 72")
    a.i("s_load_dwordx2 s[12:13], s[0:1], 88")
    a.i("v_lshrrev_b32 v1, 6, v0")
    a.i("v_and_b32 v2, 63, v0")
    a.i("v_readfirstlane_b32 s3, v1")
    a.i("s_lshl_b32 s14, s2, 6")
    a.i("v_add_u32 v3, s14, v2")
    a.i("v_lshlrev_b32 v4, 2, v3")
    a.i("s_waitcnt lgkmcnt(0)")
    srd(a, sW, 12, 13, WS_SIZE)
    srd(a, sX, 4, 5, 1152)
    srd(a, sOut, 6, 7, 1152)
    a.i(f"s_mul_i32 s36, s3, {per*2304}")
    a.i(f"s_add_u32 s36, s36, {src_off:#x}")
    for k in range(per):
        a.i(f"buffer_load_dword v{16+k}, v4, s[{sW}:{sW+3}], s36 offen")
        if k != per - 1:
            a.i("s_add_u32 s36, s36, 2304")
        if k == 59:
            a.i("s_waitcnt vmcnt(30)")
    a.i("v_lshlrev_b32 v5, 1, v3")
    if final:
        a.i(f"s_mov_b32 s36, {WS_H:#x}")
        a.i(f"buffer_load_dword v6, v4, s[{sW}:{sW+3}], s36 offen")
    else:
        a.i(f"buffer_load_ushort v6, v5, s[{sX}:{sX+3}], 0 offen")
    a.i("s_waitcnt vmcnt(0)")
    for k in range(1, per):
        a.i(f"v_add_f32 v16, v16, v{16+k}")
    a.i("v_lshlrev_b32 v7, 2, v0")
    a.i("ds_write_b32 v7, v16")
    a.i("s_waitcnt lgkmcnt(0)")
    a.i("s_barrier")
    a.i("s_cmp_lg_u32 s3, 0")
    a.i(f"s_cbranch_scc1 L_{name}_end")
    a.i("ds_read_b32 v17, v7 offset:256")
    a.i("ds_read_b32 v18, v7 offset:512")
    a.i("ds_read_b32 v19, v7 offset:768")
    a.i("s_waitcnt lgkmcnt(0)")
    a.i("v_add_f32 v16, v16, v17")
    a.i("v_add_f32 v18, v18, v19")
    a.i("v_add_f32 v16, v16, v18")
    bf16_round(a, 16)
    if not final:
        a.i("v_lshlrev_b32 v6, 16, v6")
    a.i("v_add_f32 v16, v16, v6")
    bf16_round(a, 16)
    if final:
        a.i(f"buffer_store_short_d16_hi v16, v5, s[{sOut}:{sOut+3}], 0 offen")
    else:
        a.i(f"s_mov_b32 s36, {WS_H:#x}")
        a.i(f"buffer_store_dword v16, v4, s[{sW}:{sW+3}], s36 offen")
    a.label(f"L_{name}_end")
    a.i("s_endpgm")
    return name, 88

def gen_mlp(a):
    name = "mlp_kernel"
    kernel_begin(a, name)
    sG, sD, sW = 16, 20, 24
    WG = 32
    WD = 68
    X = list(range(100, 109))
    O = list(range(8, 16))
    a.i("s_cmp_ge_u32 s2, 144")
    a.i("s_cbranch_scc1 L_mlp_end")
    a.i("s_load_dwordx4 s[4:7], s[0:1], 48")
    a.i("s_load_dwordx2 s[8:9], s[0:1], 64")
    a.i("s_load_dwordx2 s[12:13], s[0:1], 88")
    a.i("v_lshrrev_b32 v1, 6, v0")
    a.i("v_and_b32 v2, 63, v0")
    a.i("v_readfirstlane_b32 s3, v1")
    a.i("s_waitcnt lgkmcnt(0)")
    srd(a, sW, 12, 13, WS_SIZE)
    a.i("v_lshlrev_b32 v3, 2, v2")
    a.i(f"s_mov_b32 s36, {WS_H:#x}")
    for i in range(9):
        a.i(f"buffer_load_dword v{X[i]}, v3, s[{sW}:{sW+3}], s36 offen offset:{256*i}")
    a.i("s_cmp_ge_u32 s3, 4")
    a.i("s_cselect_b32 s4, s6, s4")
    a.i("s_cselect_b32 s5, s7, s5")
    srd(a, sG, 4, 5, 576 * 9216)
    srd(a, sD, 8, 9, 4608 * 1152)
    a.i("s_and_b32 s14, s3, 3")
    a.i("s_mul_i32 s14, s14, 144")
    a.i("v_lshrrev_b32 v4, 2, v2")
    a.i("v_mul_u32_u24 v4, 9, v4")
    a.i("v_add_u32 v4, s14, v4")
    a.i("s_movk_i32 s15, 9216")
    a.i("v_mul_lo_u32 v5, v4, s15")
    a.i("v_and_b32 v6, 3, v2")
    a.i("v_lshl_add_u32 v5, v6, 4, v5")
    a.i("s_lshl_b32 s36, s2, 6")
    for t in range(9):
        a.i(f"buffer_load_dwordx4 v[{WG+4*t}:{WG+4*t+3}], v5, s[{sG}:{sG+3}], s36 offen")
        if t != 8:
            a.i("s_add_u32 s36, s36, 9216")
    a.i("v_lshlrev_b32 v16, 2, v0")
    a.i("v_mov_b32 v17, 0x7fffff00")
    a.i("v_cmp_gt_u32 vcc, 288, v0")
    a.i("v_cndmask_b32 v17, v17, v16, vcc")
    a.i(f"s_mul_i32 s36, s2, {32*1152}")
    for r in range(32):
        a.i(f"buffer_load_dword v{WD+r}, v17, s[{sD}:{sD+3}], s36 offen")
        if r != 31:
            a.i("s_add_u32 s36, s36, 1152")
    a.i("s_waitcnt vmcnt(41)")
    layernorm(a, X, [], 18, 19, 20, 21)
    a.i("v_lshlrev_b32 v7, 1, v2")
    for i in range(9):
        a.i(f"ds_write_b16_d16_hi v7, v{X[i]} offset:{128*i}")
    a.i("v_lshlrev_b32 v4, 1, v4")
    a.i("s_waitcnt lgkmcnt(0)")
    for t in range(9):
        a.i(f"ds_read_u16 v{X[t]}, v4 offset:{2*t}")
    for e in range(8):
        a.i(f"v_mov_b32 v{O[e]}, 0")
    a.i("s_waitcnt lgkmcnt(0)")
    for t in range(9):
        a.i(f"v_lshlrev_b32 v18, 16, v{X[t]}")
        a.i(f"s_waitcnt vmcnt({32 + 8 - t})")
        for d in range(4):
            a.i(f"v_dot2c_f32_bf16 v{O[2*d]}, v{WG+4*t+d}, v{X[t]}")
            a.i(f"v_dot2c_f32_bf16 v{O[2*d+1]}, v{WG+4*t+d}, v18")
    for e in range(8):
        a.i(f"v_add_f32_dpp v{O[e]}, v{O[e]}, v{O[e]} row_ror:4 row_mask:0xf bank_mask:0xf")
    for e in range(8):
        a.i(f"v_add_f32_dpp v{O[e]}, v{O[e]}, v{O[e]} row_ror:8 row_mask:0xf bank_mask:0xf")
    c0, c1 = reduce8_rows(a, O)
    a.i("v_lshlrev_b32 v18, 5, v6")
    a.i("v_lshrrev_b32 v19, 4, v2")
    a.i("v_lshl_add_u32 v18, v19, 3, v18")
    a.i("s_lshl_b32 s36, s3, 7")
    a.i("v_add_u32 v18, s36, v18")
    a.i(f"ds_write_b64 v18, v[{c0}:{c1}] offset:2048")
    a.i("s_waitcnt lgkmcnt(0)")
    a.i("s_barrier")
    a.i("v_and_b32 v18, 31, v2")
    a.i("v_lshlrev_b32 v18, 2, v18")
    for w in range(8):
        a.i(f"ds_read_b32 v{20+w}, v18 offset:{2048+128*w}")
    a.i("s_waitcnt lgkmcnt(0)")
    a.i("v_add_f32 v20, v20, v21")
    a.i("v_add_f32 v22, v22, v23")
    a.i("v_add_f32 v20, v20, v22")
    a.i("v_add_f32 v24, v24, v25")
    a.i("v_add_f32 v26, v26, v27")
    a.i("v_add_f32 v24, v24, v26")
    bf16_round(a, 20)
    bf16_round(a, 24)
    a.i("v_mul_f32 v21, v20, v20")
    a.i("v_mul_f32 v21, v21, v20")
    a.i("v_mov_b32 v22, 0x3d372713")
    a.i("v_fma_f32 v21, v21, v22, v20")
    a.i("v_mul_f32 v21, 0xc0135761, v21")
    a.i("v_exp_f32 v21, v21")
    a.i("v_add_f32 v21, 1.0, v21")
    a.i("v_rcp_f32 v21, v21")
    a.i("v_mul_f32 v21, v21, v20")
    bf16_round(a, 21)
    a.i("v_mul_f32 v21, v21, v24")
    a.i("v_cvt_pk_bf16_f32 v21, v21, v21")
    a.i("v_and_b32 v22, 0xffff0000, v21")
    a.i("v_and_b32 v21, 0xffff, v21")
    a.i("ds_write_b32 v18, v21 offset:4096")
    a.i("ds_write_b32 v18, v22 offset:4224")
    a.i("v_mov_b32 v19, 0")
    a.i("s_waitcnt lgkmcnt(0)")
    HL = 112
    for k in range(16):
        a.i(f"ds_read_b128 v[{HL+4*k}:{HL+4*k+3}], v19 offset:{4096+16*k}")
    a.i("v_mov_b32 v10, 0")
    a.i("v_mov_b32 v11, 0")
    a.i("s_waitcnt vmcnt(0) lgkmcnt(0)")
    for r in range(32):
        a.i(f"v_dot2c_f32_bf16 v10, v{WD+r}, v{HL+r}")
        a.i(f"v_dot2c_f32_bf16 v11, v{WD+r}, v{HL+32+r}")
    a.i("s_mul_i32 s38, s2, 2304")
    a.i(f"s_add_u32 s38, s38, {WS_YD:#x}")
    a.i("v_lshlrev_b32 v3, 3, v0")
    a.i("v_mov_b32 v4, 0x7fffff00")
    a.i("v_cndmask_b32 v4, v4, v3, vcc")
    a.i(f"buffer_store_dwordx2 v[10:11], v4, s[{sW}:{sW+3}], s38 offen")
    a.label("L_mlp_end")
    a.i("s_endpgm")
    return name, 176

def build(path, nt=""):
    a = Asm()
    ks = []
    ks.append(gen_attn(a, nt))
    ks.append(gen_oproj(a))
    ks.append(gen_reduce(a, "redh_kernel", 256, WS_YO, False))
    ks.append(gen_mlp(a))
    ks.append(gen_reduce(a, "fin_kernel", 144, WS_YD, True))
    launches = [
        "; @launch kernel=attn_kernel grid=(256,1,1) block=(512,1,1) lds=20480",
        "; @launch kernel=oproj_kernel grid=(256,1,1) block=(320,1,1) lds=1024",
        "; @launch kernel=redh_kernel grid=(9,1,1) block=(256,1,1) lds=1024",
        "; @launch kernel=mlp_kernel grid=(144,1,1) block=(512,1,1) lds=8192",
        "; @launch kernel=fin_kernel grid=(9,1,1) block=(256,1,1) lds=1024",
    ]
    s = HEADER + "\n".join(launches) + "\n" + '.amdgcn_target "amdgcn-amd-amdhsa--gfx950"\n' + a.text()
    for n, v in ks:
        s += kernel_desc(n, v)
    open(path, "w").write(s)
    print("nops inserted:", a.nops)

if __name__ == "__main__":
    build(sys.argv[1], " nt" if len(sys.argv) > 2 and sys.argv[2] == "nt" else "")
```

```python
import sys
from asmlib import Asm

NAME = "sequential_preLN__mha_block_cached__glu_gated_geglu__decode"
HEADER = open("cdna_kernels/" + NAME + ".s.ref").read().split("; Override launch")[0]

LOG2E = 0x3fb8aa3b
SCALE = 0x3db504f3
EPS = 0x3727c5ac
INV576 = 0x3ae38e39

WS_PART = 0
WS_YO = 0x40000
WS_H = 0x100000
WS_YD = 0x110000
WS_SIZE = 0x200000

def kernel_begin(a, name):
    a.raw(".text")
    a.raw(f".globl {name}")
    a.raw(".p2align 8")
    a.raw(f".type {name},@function")
    a.raw(f"{name}:")

def kernel_desc(name, vgpr, sgpr=102):
    acc = (vgpr + 3) // 4 * 4
    return f""".section .rodata,"a"
.p2align 6
.amdhsa_kernel {name}
  .amdhsa_next_free_vgpr {vgpr}
  .amdhsa_next_free_sgpr {sgpr}
  .amdhsa_accum_offset {acc}
  .amdhsa_group_segment_fixed_size 0
  .amdhsa_kernarg_size 96
  .amdhsa_user_sgpr_count 2
  .amdhsa_user_sgpr_kernarg_segment_ptr 1
  .amdhsa_system_sgpr_workgroup_id_x 1
  .amdhsa_float_denorm_mode_32 3
  .amdhsa_float_denorm_mode_16_64 3
.end_amdhsa_kernel
"""

def srd(a, d, lo, hi, nrec):
    if d != lo:
        a.i(f"s_mov_b32 s{d}, s{lo}")
    a.i(f"s_and_b32 s{d+1}, s{hi}, 0xffff")
    a.i(f"s_mov_b32 s{d+2}, {nrec:#x}")
    a.i(f"s_mov_b32 s{d+3}, 0x20000")

def wave_sum(a, v, t0, t1):
    a.i(f"v_add_f32_dpp v{v}, v{v}, v{v} quad_perm:[1,0,3,2] row_mask:0xf bank_mask:0xf")
    a.i(f"v_add_f32_dpp v{v}, v{v}, v{v} quad_perm:[2,3,0,1] row_mask:0xf bank_mask:0xf")
    a.i(f"v_add_f32_dpp v{v}, v{v}, v{v} row_half_mirror row_mask:0xf bank_mask:0xf")
    a.i(f"v_add_f32_dpp v{v}, v{v}, v{v} row_mirror row_mask:0xf bank_mask:0xf")
    rows_op(a, "v_add_f32", v, t0)

def rows_op(a, op, v, t0):
    a.i(f"v_mov_b32 v{t0}, v{v}")
    a.i(f"v_permlane32_swap_b32 v{v}, v{t0}")
    a.i(f"{op} v{v}, v{v}, v{t0}")
    a.i(f"v_mov_b32 v{t0}, v{v}")
    a.i(f"v_permlane16_swap_b32 v{v}, v{t0}")
    a.i(f"{op} v{v}, v{v}, v{t0}")

def bf16_round(a, v):
    a.i(f"v_cvt_pk_bf16_f32 v{v}, v{v}, v{v}")
    a.i(f"v_and_b32 v{v}, 0xffff0000, v{v}")

def layernorm(a, xs, valid_mask_last, t0, t1, t2, t3):
    a.i(f"v_add_f32 v{t0}, v{xs[0]}, v{xs[1]}")
    for x in xs[2:]:
        a.i(f"v_add_f32 v{t0}, v{t0}, v{x}")
    wave_sum(a, t0, t1, t2)
    a.i(f"v_mul_f32 v{t0}, {INV576:#x}, v{t0}")
    a.i(f"v_mov_b32 v{t2}, 0")
    for x in xs:
        a.i(f"v_sub_f32 v{t1}, v{x}, v{t0}")
        if x in valid_mask_last:
            a.i(f"v_cndmask_b32 v{t1}, 0, v{t1}, s[40:41]")
        a.i(f"v_fmac_f32 v{t2}, v{t1}, v{t1}")
    wave_sum(a, t2, t1, t3)
    a.i(f"v_mul_f32 v{t2}, {INV576:#x}, v{t2}")
    bf16_round(a, t0)
    bf16_round(a, t2)
    a.i(f"v_add_f32 v{t2}, {EPS:#x}, v{t2}")
    bf16_round(a, t2)
    a.i(f"v_sqrt_f32 v{t2}, v{t2}")
    bf16_round(a, t2)
    a.i(f"v_rcp_f32 v{t2}, v{t2}")
    for x in xs:
        a.i(f"v_sub_f32 v{x}, v{x}, v{t0}")
        bf16_round(a, x)
        a.i(f"v_mul_f32 v{x}, v{x}, v{t2}")
        bf16_round(a, x)

def reduce8_rows(a, acc):
    for e in range(4):
        a.i(f"v_permlane32_swap_b32 v{acc[e]}, v{acc[e+4]}")
    for e in range(4):
        a.i(f"v_add_f32 v{acc[e]}, v{acc[e]}, v{acc[e+4]}")
    a.i(f"v_permlane16_swap_b32 v{acc[0]}, v{acc[2]}")
    a.i(f"v_permlane16_swap_b32 v{acc[1]}, v{acc[3]}")
    a.i(f"v_add_f32 v{acc[0]}, v{acc[0]}, v{acc[2]}")
    a.i(f"v_add_f32 v{acc[1]}, v{acc[1]}, v{acc[3]}")
    return acc[0], acc[1]

def gen_attn(a, nt="", ntv=None):
    if ntv is None: ntv = nt
    name = "attn_kernel"
    kernel_begin(a, name)
    Q = [4, 5, 6, 7]
    O = list(range(8, 16))
    M, L = 16, 17
    A = list(range(18, 26))
    T = list(range(26, 40))
    KB = [40, 72]
    VB = [104, 136]
    WQ = 168
    X = list(range(240, 250))
    sK, sV, sQ, sX, sW = 16, 20, 24, 28, 32
    a.i("s_cmp_ge_u32 s2, 256")
    a.i("s_cbranch_scc1 L_attn_end")
    a.i("s_load_dwordx8 s[4:11], s[0:1], 0")
    a.i("s_load_dwordx2 s[12:13], s[0:1], 88")
    a.i("v_lshrrev_b32 v1, 6, v0")
    a.i("v_and_b32 v2, 63, v0")
    a.i("v_readfirstlane_b32 s3, v1")
    a.i("s_and_b32 s14, s2, 31")
    a.i("s_lshr_b32 s15, s2, 5")
    a.i("s_lshl_b32 s36, s14, 22")
    a.i("s_lshl_b32 s37, s15, 19")
    a.i("s_add_u32 s36, s36, s37")
    a.i("v_cmp_gt_u32 s[40:41], 32, v2")
    a.i("s_waitcnt lgkmcnt(0)")
    srd(a, sX, 4, 5, 1152)
    a.i("v_lshlrev_b32 v3, 2, v2")
    for i in range(5):
        a.i(f"buffer_load_dword v{X[i]}, v3, s[{sX}:{sX+3}], 0 offen offset:{256*i}")
    srd(a, sQ, 10, 11, 576 * 8192)
    a.i("v_lshrrev_b32 v26, 4, v2")
    a.i("v_and_b32 v27, 15, v2")
    a.i("v_mul_u32_u24 v28, 18, v26")
    a.i("s_mul_i32 s38, s3, 72")
    a.i("v_add_u32 v28, s38, v28")
    a.i("v_lshlrev_b32 v29, 13, v28")
    a.i("v_lshl_add_u32 v29, v27, 4, v29")
    a.i("s_lshl_b32 s38, s14, 8")
    for t in range(18):
        a.i(f"buffer_load_dwordx4 v[{WQ+4*t}:{WQ+4*t+3}], v29, s[{sQ}:{sQ+3}], s38 offen")
        if t != 17:
            a.i("s_add_u32 s38, s38, 8192")
    a.i("s_add_u32 s6, s6, s36")
    a.i("s_addc_u32 s7, s7, 0")
    a.i("s_add_u32 s8, s8, s36")
    a.i("s_addc_u32 s9, s9, 0")
    srd(a, sK, 6, 7, 512 * 1024)
    srd(a, sV, 8, 9, 512 * 1024)
    srd(a, sW, 12, 13, WS_SIZE)
    a.i("v_lshlrev_b32 v1, 13, v1")
    a.i("v_lshl_add_u32 v1, v2, 4, v1")
    def loads(buf, srdreg, sA):
        for t in range(8):
            so = sA if t < 4 else sA + 1
            a.i(f"buffer_load_dwordx4 v[{buf+4*t}:{buf+4*t+3}], v1, s[{srdreg}:{srdreg+3}], s{so} offen offset:{(t&3)*1024}{nt if srdreg == sK else ntv}")
    a.i("s_mov_b32 s42, 0")
    a.i("s_mov_b32 s43, 4096")
    a.i("s_mov_b32 s44, 0x10000")
    a.i("s_mov_b32 s45, 0x11000")
    loads(KB[0], sK, 42)
    loads(VB[0], sV, 42)
    loads(KB[1], sK, 44)
    loads(VB[1], sV, 44)
    a.i("s_waitcnt vmcnt(50)")
    xs = []
    for i in range(5):
        a.i(f"v_and_b32 v{X[5+i]}, 0xffff0000, v{X[i]}")
        a.i(f"v_lshlrev_b32 v{X[i]}, 16, v{X[i]}")
    xs = X
    layernorm(a, xs, [X[4], X[9]], T[4], T[5], T[6], T[7])
    for i in range(5):
        a.i(f"v_lshrrev_b32 v{X[i]}, 16, v{X[i]}")
        a.i(f"v_or_b32 v{X[i]}, v{X[i]}, v{X[5+i]}")
        a.i(f"ds_write_b32 v3, v{X[i]} offset:{256*i}")
    a.i("v_lshlrev_b32 v28, 1, v28")
    a.i("s_waitcnt lgkmcnt(0)")
    for i in range(9):
        a.i(f"ds_read_b32 v{X[i]}, v28 offset:{4*i}")
    for e in range(8):
        a.i(f"v_mov_b32 v{O[e]}, 0")
    a.i("s_waitcnt lgkmcnt(0)")
    for t in range(18):
        xr = X[t // 2]
        if t % 2 == 0:
            a.i(f"v_and_b32 v{T[8]}, 0xffff, v{xr}")
            a.i(f"v_lshlrev_b32 v{T[9]}, 16, v{xr}")
        else:
            a.i(f"v_lshrrev_b32 v{T[8]}, 16, v{xr}")
            a.i(f"v_and_b32 v{T[9]}, 0xffff0000, v{xr}")
        a.i(f"s_waitcnt vmcnt({32 + 17 - t})")
        for d in range(4):
            a.i(f"v_dot2c_f32_bf16 v{O[2*d]}, v{WQ+4*t+d}, v{T[8]}")
            a.i(f"v_dot2c_f32_bf16 v{O[2*d+1]}, v{WQ+4*t+d}, v{T[9]}")
    c0, c1 = reduce8_rows(a, O)
    a.i("v_lshlrev_b32 v30, 5, v27")
    a.i("v_lshrrev_b32 v31, 4, v2")
    a.i("v_lshl_add_u32 v30, v31, 3, v30")
    a.i("s_lshl_b32 s38, s3, 9")
    a.i("v_add_u32 v30, s38, v30")
    a.i(f"ds_write_b64 v30, v[{c0}:{c1}] offset:2048")
    a.i("s_waitcnt lgkmcnt(0)")
    a.i("s_barrier")
    a.i("v_lshlrev_b32 v30, 3, v2")
    for w in range(8):
        a.i(f"ds_read_b64 v[{WQ+2*w}:{WQ+2*w+1}], v30 offset:{2048+512*w}")
    a.i("s_waitcnt lgkmcnt(0)")
    for w in range(1, 8):
        a.i(f"v_add_f32 v{WQ}, v{WQ}, v{WQ+2*w}")
        a.i(f"v_add_f32 v{WQ+1}, v{WQ+1}, v{WQ+2*w+1}")
    a.i(f"v_cvt_pk_bf16_f32 v{WQ}, v{WQ}, v{WQ+1}")
    a.i(f"ds_write_b32 v3, v{WQ} offset:8192")
    a.i("v_lshlrev_b32 v30, 4, v27")
    a.i("s_waitcnt lgkmcnt(0)")
    a.i(f"ds_read_b128 v[{Q[0]}:{Q[3]}], v30 offset:8192")
    for e in range(8):
        a.i(f"v_mov_b32 v{O[e]}, 0")
    a.i(f"v_mov_b32 v{M}, 0xff800000")
    a.i(f"v_mov_b32 v{L}, 0")
    a.i("s_mov_b32 s46, 0")
    a.i(f"s_mov_b32 s47, {LOG2E:#x}")
    a.i(f"s_mov_b32 s48, {SCALE:#x}")
    a.i("s_mov_b32 s49, 0xffff0000")
    a.i("s_waitcnt lgkmcnt(0)")
    a.label("L_attn_loop")
    for b in range(2):
        kb, vb = KB[b], VB[b]
        sA = 42 + 2 * b
        a.i("s_waitcnt vmcnt(24)")
        for d in range(4):
            for t in range(8):
                if d == 0:
                    a.i(f"v_dot2_f32_bf16 v{A[t]}, v{kb+4*t}, v{Q[0]}, 0")
                else:
                    a.i(f"v_dot2_f32_bf16 v{A[t]}, v{kb+4*t+d}, v{Q[d]}, v{A[t]}")
        a.i(f"s_add_u32 s{sA}, s{sA}, 0x20000")
        a.i(f"s_add_u32 s{sA+1}, s{sA+1}, 0x20000")
        loads(kb, sK, sA)
        for t in range(4):
            a.i(f"v_add_f32_dpp v{A[t]}, v{A[t]}, v{A[t]} row_mirror row_mask:0xf bank_mask:0x3")
        for t in range(4):
            a.i(f"v_add_f32_dpp v{A[t]}, v{A[t+4]}, v{A[t+4]} row_mirror row_mask:0xf bank_mask:0xc")
        for u in range(2):
            a.i(f"v_add_f32_dpp v{A[u]}, v{A[u]}, v{A[u]} row_half_mirror row_mask:0xf bank_mask:0x5")
        for u in range(2):
            a.i(f"v_add_f32_dpp v{A[u]}, v{A[u+2]}, v{A[u+2]} row_half_mirror row_mask:0xf bank_mask:0xa")
        for u in range(2):
            a.i(f"v_add_f32_dpp v{A[u]}, v{A[u]}, v{A[u]} quad_perm:[1,0,3,2] row_mask:0xf bank_mask:0xf")
        for u in range(2):
            a.i(f"v_add_f32_dpp v{A[u]}, v{A[u]}, v{A[u]} quad_perm:[2,3,0,1] row_mask:0xf bank_mask:0xf")
        S0, S1 = A[0], A[1]
        t0, t1, t2 = A[2], A[3], A[4]
        a.i(f"v_cvt_pk_bf16_f32 v{t0}, v{S0}, v{S1}")
        a.i(f"v_lshlrev_b32 v{S0}, 16, v{t0}")
        a.i(f"v_and_b32 v{S1}, s49, v{t0}")
        a.i(f"v_mul_f32 v{S0}, s48, v{S0}")
        a.i(f"v_mul_f32 v{S1}, s48, v{S1}")
        a.i(f"v_cvt_pk_bf16_f32 v{t0}, v{S0}, v{S1}")
        a.i(f"v_lshlrev_b32 v{S0}, 16, v{t0}")
        a.i(f"v_and_b32 v{S1}, s49, v{t0}")
        a.i(f"v_max3_f32 v{t0}, v{S0}, v{S1}, v{M}")
        a.i(f"v_max_f32_dpp v{t0}, v{t0}, v{t0} row_half_mirror row_mask:0xf bank_mask:0xf")
        a.i(f"v_max_f32_dpp v{t0}, v{t0}, v{t0} row_mirror row_mask:0xf bank_mask:0xf")
        a.i(f"v_sub_f32 v{t1}, v{M}, v{t0}")
        a.i(f"v_sub_f32 v{S0}, v{S0}, v{t0}")
        a.i(f"v_sub_f32 v{S1}, v{S1}, v{t0}")
        a.i(f"v_mov_b32 v{M}, v{t0}")
        a.i(f"v_mul_f32 v{t1}, s47, v{t1}")
        a.i(f"v_mul_f32 v{S0}, s47, v{S0}")
        a.i(f"v_mul_f32 v{S1}, s47, v{S1}")
        a.i(f"v_exp_f32 v{t1}, v{t1}")
        a.i(f"v_exp_f32 v{S0}, v{S0}")
        a.i(f"v_exp_f32 v{S1}, v{S1}")
        a.i(f"v_fma_f32 v{L}, v{L}, v{t1}, v{S0}")
        for e in range(8):
            a.i(f"v_mul_f32 v{O[e]}, v{O[e]}, v{t1}")
        a.i(f"v_add_f32 v{L}, v{L}, v{S1}")
        a.i("s_waitcnt vmcnt(24)")
        for t in range(8):
            P = A[t & 1]
            bank = t >> 1
            for d in range(4):
                a.i(f"v_lshlrev_b32 v{T[2*d]}, 16, v{vb+4*t+d}")
                a.i(f"v_and_b32 v{T[2*d+1]}, s49, v{vb+4*t+d}")
            for e in range(8):
                a.i(f"v_fmac_f32_dpp v{O[e]}, v{P}, v{T[e]} row_newbcast:{4*bank} row_mask:0xf bank_mask:0xf")
        loads(vb, sV, sA)
    a.i("s_add_u32 s46, s46, 1")
    a.i("s_cmp_lt_u32 s46, 4")
    a.i("s_cbranch_scc1 L_attn_loop")
    a.i(f"v_add_f32_dpp v{L}, v{L}, v{L} row_half_mirror row_mask:0xf bank_mask:0xf")
    a.i(f"v_add_f32_dpp v{L}, v{L}, v{L} row_mirror row_mask:0xf bank_mask:0xf")
    a.i(f"v_mov_b32 v{A[0]}, v{M}")
    rows_op(a, "v_max_f32", A[0], A[1])
    a.i(f"v_sub_f32 v{A[2]}, v{M}, v{A[0]}")
    a.i(f"v_mul_f32 v{A[2]}, s47, v{A[2]}")
    a.i(f"v_exp_f32 v{A[2]}, v{A[2]}")
    a.i(f"v_mul_f32 v{L}, v{L}, v{A[2]}")
    for e in range(8):
        a.i(f"v_mul_f32 v{O[e]}, v{O[e]}, v{A[2]}")
    rows_op(a, "v_add_f32", L, A[1])
    c0, c1 = reduce8_rows(a, O)
    a.i("v_and_b32 v27, 15, v2")
    a.i("v_lshlrev_b32 v30, 5, v27")
    a.i("v_lshrrev_b32 v31, 4, v2")
    a.i("v_lshl_add_u32 v30, v31, 3, v30")
    a.i("s_lshl_b32 s38, s3, 9")
    a.i("v_add_u32 v30, s38, v30")
    a.i(f"ds_write_b64 v30, v[{c0}:{c1}] offset:12288")
    a.i(f"v_mov_b32 v{A[1]}, v{L}")
    a.i("s_lshl_b32 s38, s3, 3")
    a.i("v_mov_b32 v30, s38")
    a.i(f"ds_write_b64 v30, v[{A[0]}:{A[1]}] offset:16384")
    a.i("s_waitcnt lgkmcnt(0)")
    a.i("s_barrier")
    a.i("s_cmp_lg_u32 s3, 0")
    a.i("s_cbranch_scc1 L_attn_end")
    a.i("v_mov_b32 v30, 0")
    for k in range(4):
        a.i(f"ds_read_b128 v[{40+4*k}:{43+4*k}], v30 offset:{16384+16*k}")
    a.i("v_lshlrev_b32 v30, 3, v2")
    for w in range(8):
        a.i(f"ds_read_b64 v[{56+2*w}:{57+2*w}], v30 offset:{12288+512*w}")
    a.i("s_waitcnt lgkmcnt(0)")
    a.i("v_max3_f32 v26, v40, v42, v44")
    a.i("v_max3_f32 v26, v26, v46, v48")
    a.i("v_max3_f32 v26, v26, v50, v52")
    a.i("v_max_f32 v26, v26, v54")
    a.i("v_mov_b32 v27, 0")
    a.i("v_mov_b32 v28, 0")
    a.i("v_mov_b32 v29, 0")
    for w in range(8):
        a.i(f"v_sub_f32 v31, v{40+2*w}, v26")
        a.i("v_mul_f32 v31, s47, v31")
        a.i("v_exp_f32 v31, v31")
        a.i(f"v_fmac_f32 v27, v31, v{41+2*w}")
        a.i(f"v_fmac_f32 v28, v31, v{56+2*w}")
        a.i(f"v_fmac_f32 v29, v31, v{57+2*w}")
    a.i("s_lshl_b32 s38, s2, 10")
    a.i(f"buffer_store_dwordx2 v[28:29], v30, s[{sW}:{sW+3}], s38 offen")
    a.i("v_mov_b32 v30, 512")
    a.i(f"buffer_store_dwordx2 v[26:27], v30, s[{sW}:{sW+3}], s38 offen")
    a.label("L_attn_end")
    a.i("s_endpgm")
    return name, 250

def gen_oproj(a):
    name = "oproj_kernel"
    kernel_begin(a, name)
    sO, sW = 16, 20
    W = 32
    a.i("s_cmp_ge_u32 s2, 256")
    a.i("s_cbranch_scc1 L_oproj_end")
    a.i("s_load_dwordx2 s[4:5], s[0:1], 32")
    a.i("s_load_dwordx2 s[12:13], s[0:1], 88")
    a.i("v_lshrrev_b32 v1, 6, v0")
    a.i("v_and_b32 v2, 63, v0")
    a.i("v_readfirstlane_b32 s3, v1")
    a.i("s_and_b32 s14, s2, 31")
    a.i("s_lshr_b32 s15, s2, 5")
    a.i(f"s_mov_b32 s47, {LOG2E:#x}")
    a.i("s_waitcnt lgkmcnt(0)")
    srd(a, sO, 4, 5, 4096 * 1152)
    srd(a, sW, 12, 13, WS_SIZE)
    a.i("s_lshl_b32 s36, s14, 7")
    a.i("s_lshl_b32 s37, s15, 4")
    a.i("s_add_u32 s36, s36, s37")
    a.i("s_mul_i32 s36, s36, 1152")
    a.i("v_lshlrev_b32 v3, 2, v0")
    a.i("v_mov_b32 v4, 0x7fffff00")
    a.i("v_cmp_gt_u32 vcc, 288, v0")
    a.i("v_cndmask_b32 v4, v4, v3, vcc")
    for e in range(16):
        a.i(f"buffer_load_dword v{W+e}, v4, s[{sO}:{sO+3}], s36 offen")
        if e != 15:
            a.i("s_add_u32 s36, s36, 1152")
    a.i("s_cmp_lg_u32 s3, 0")
    a.i("s_cbranch_scc1 L_oproj_wait")
    a.i("v_lshrrev_b32 v5, 4, v2")
    a.i("v_and_b32 v6, 15, v2")
    a.i("v_lshlrev_b32 v7, 15, v5")
    a.i("s_lshl_b32 s38, s14, 10")
    a.i("v_add_u32 v7, s38, v7")
    a.i("v_add_u32 v8, 0x20000, v7")
    a.i(f"buffer_load_dwordx2 v[10:11], v7, s[{sW}:{sW+3}], 0 offen offset:512")
    a.i(f"buffer_load_dwordx2 v[12:13], v8, s[{sW}:{sW+3}], 0 offen offset:512")
    a.i("s_lshl_b32 s38, s15, 6")
    a.i("v_lshl_add_u32 v7, v6, 2, v7")
    a.i("v_lshl_add_u32 v8, v6, 2, v8")
    a.i(f"buffer_load_dword v14, v7, s[{sW}:{sW+3}], s38 offen")
    a.i(f"buffer_load_dword v15, v8, s[{sW}:{sW+3}], s38 offen")
    a.i("s_waitcnt vmcnt(0)")
    a.i("v_max_f32 v16, v10, v12")
    rows_op(a, "v_max_f32", 16, 17)
    a.i("v_sub_f32 v10, v10, v16")
    a.i("v_sub_f32 v12, v12, v16")
    a.i("v_mul_f32 v10, s47, v10")
    a.i("v_mul_f32 v12, s47, v12")
    a.i("v_exp_f32 v10, v10")
    a.i("v_exp_f32 v12, v12")
    a.i("v_mul_f32 v11, v10, v11")
    a.i("v_fmac_f32 v11, v12, v13")
    a.i("v_mul_f32 v14, v10, v14")
    a.i("v_fmac_f32 v14, v12, v15")
    rows_op(a, "v_add_f32", 11, 17)
    rows_op(a, "v_add_f32", 14, 17)
    a.i("v_rcp_f32 v11, v11")
    a.i("v_mul_f32 v14, v14, v11")
    a.i("v_cvt_pk_bf16_f32 v14, v14, v14")
    a.i("v_and_b32 v15, 0xffff0000, v14")
    a.i("v_and_b32 v14, 0xffff, v14")
    a.i("v_lshlrev_b32 v6, 2, v6")
    a.i("ds_write_b32 v6, v14")
    a.i("ds_write_b32 v6, v15 offset:64")
    a.i("s_waitcnt lgkmcnt(0)")
    a.label("L_oproj_wait")
    a.i("s_barrier")
    a.i("v_mov_b32 v5, 0")
    for k in range(8):
        a.i(f"ds_read_b128 v[{48+4*k}:{51+4*k}], v5 offset:{16*k}")
    a.i("v_mov_b32 v10, 0")
    a.i("v_mov_b32 v11, 0")
    a.i("s_waitcnt vmcnt(0) lgkmcnt(0)")
    for e in range(16):
        a.i(f"v_dot2c_f32_bf16 v10, v{W+e}, v{48+e}")
        a.i(f"v_dot2c_f32_bf16 v11, v{W+e}, v{64+e}")
    a.i("s_mul_i32 s38, s2, 2304")
    a.i(f"s_add_u32 s38, s38, {WS_YO:#x}")
    a.i("v_lshlrev_b32 v3, 3, v0")
    a.i("v_mov_b32 v4, 0x7fffff00")
    a.i("v_cndmask_b32 v4, v4, v3, vcc")
    a.i(f"buffer_store_dwordx2 v[10:11], v4, s[{sW}:{sW+3}], s38 offen")
    a.label("L_oproj_end")
    a.i("s_endpgm")
    return name, 80

def gen_reduce(a, name, nparts, src_off, final):
    kernel_begin(a, name)
    sW, sX, sOut = 16, 20, 24
    per = nparts // 4
    a.i("s_cmp_ge_u32 s2, 9")
    a.i(f"s_cbranch_scc1 L_{name}_end")
    a.i("s_load_dwordx2 s[4:5], s[0:1], 0")
    a.i("s_load_dwordx2 s[6:7], s[0:1], 72")
    a.i("s_load_dwordx2 s[12:13], s[0:1], 88")
    a.i("v_lshrrev_b32 v1, 6, v0")
    a.i("v_and_b32 v2, 63, v0")
    a.i("v_readfirstlane_b32 s3, v1")
    a.i("s_lshl_b32 s14, s2, 6")
    a.i("v_add_u32 v3, s14, v2")
    a.i("v_lshlrev_b32 v4, 2, v3")
    a.i("s_waitcnt lgkmcnt(0)")
    srd(a, sW, 12, 13, WS_SIZE)
    srd(a, sX, 4, 5, 1152)
    srd(a, sOut, 6, 7, 1152)
    a.i(f"s_mul_i32 s36, s3, {per*2304}")
    a.i(f"s_add_u32 s36, s36, {src_off:#x}")
    for k in range(per):
        a.i(f"buffer_load_dword v{16+k}, v4, s[{sW}:{sW+3}], s36 offen")
        if k != per - 1:
            a.i("s_add_u32 s36, s36, 2304")
        if k == 59:
            a.i("s_waitcnt vmcnt(30)")
    a.i("v_lshlrev_b32 v5, 1, v3")
    if final:
        a.i(f"s_mov_b32 s36, {WS_H:#x}")
        a.i(f"buffer_load_dword v6, v4, s[{sW}:{sW+3}], s36 offen")
    else:
        a.i(f"buffer_load_ushort v6, v5, s[{sX}:{sX+3}], 0 offen")
    a.i("s_waitcnt vmcnt(0)")
    for k in range(1, per):
        a.i(f"v_add_f32 v16, v16, v{16+k}")
    a.i("v_lshlrev_b32 v7, 2, v0")
    a.i("ds_write_b32 v7, v16")
    a.i("s_waitcnt lgkmcnt(0)")
    a.i("s_barrier")
    a.i("s_cmp_lg_u32 s3, 0")
    a.i(f"s_cbranch_scc1 L_{name}_end")
    a.i("ds_read_b32 v17, v7 offset:256")
    a.i("ds_read_b32 v18, v7 offset:512")
    a.i("ds_read_b32 v19, v7 offset:768")
    a.i("s_waitcnt lgkmcnt(0)")
    a.i("v_add_f32 v16, v16, v17")
    a.i("v_add_f32 v18, v18, v19")
    a.i("v_add_f32 v16, v16, v18")
    bf16_round(a, 16)
    if not final:
        a.i("v_lshlrev_b32 v6, 16, v6")
    a.i("v_add_f32 v16, v16, v6")
    bf16_round(a, 16)
    if final:
        a.i(f"buffer_store_short_d16_hi v16, v5, s[{sOut}:{sOut+3}], 0 offen")
    else:
        a.i(f"s_mov_b32 s36, {WS_H:#x}")
        a.i(f"buffer_store_dword v16, v4, s[{sW}:{sW+3}], s36 offen")
    a.label(f"L_{name}_end")
    a.i("s_endpgm")
    return name, 88

def gen_mlp(a):
    name = "mlp_kernel"
    kernel_begin(a, name)
    sG, sD, sW = 16, 20, 24
    WG = 32
    WD = 68
    X = list(range(100, 109))
    O = list(range(8, 16))
    a.i("s_cmp_ge_u32 s2, 144")
    a.i("s_cbranch_scc1 L_mlp_end")
    a.i("s_load_dwordx4 s[4:7], s[0:1], 48")
    a.i("s_load_dwordx2 s[8:9], s[0:1], 64")
    a.i("s_load_dwordx2 s[12:13], s[0:1], 88")
    a.i("v_lshrrev_b32 v1, 6, v0")
    a.i("v_and_b32 v2, 63, v0")
    a.i("v_readfirstlane_b32 s3, v1")
    a.i("s_waitcnt lgkmcnt(0)")
    srd(a, sW, 12, 13, WS_SIZE)
    a.i("v_lshlrev_b32 v3, 2, v2")
    a.i(f"s_mov_b32 s36, {WS_H:#x}")
    for i in range(9):
        a.i(f"buffer_load_dword v{X[i]}, v3, s[{sW}:{sW+3}], s36 offen offset:{256*i}")
    a.i("s_cmp_ge_u32 s3, 4")
    a.i("s_cselect_b32 s4, s6, s4")
    a.i("s_cselect_b32 s5, s7, s5")
    srd(a, sG, 4, 5, 576 * 9216)
    srd(a, sD, 8, 9, 4608 * 1152)
    a.i("s_and_b32 s14, s3, 3")
    a.i("s_mul_i32 s14, s14, 144")
    a.i("v_lshrrev_b32 v4, 2, v2")
    a.i("v_mul_u32_u24 v4, 9, v4")
    a.i("v_add_u32 v4, s14, v4")
    a.i("s_movk_i32 s15, 9216")
    a.i("v_mul_lo_u32 v5, v4, s15")
    a.i("v_and_b32 v6, 3, v2")
    a.i("v_lshl_add_u32 v5, v6, 4, v5")
    a.i("s_lshl_b32 s36, s2, 6")
    for t in range(9):
        a.i(f"buffer_load_dwordx4 v[{WG+4*t}:{WG+4*t+3}], v5, s[{sG}:{sG+3}], s36 offen")
        if t != 8:
            a.i("s_add_u32 s36, s36, 9216")
    a.i("v_lshlrev_b32 v16, 2, v0")
    a.i("v_mov_b32 v17, 0x7fffff00")
    a.i("v_cmp_gt_u32 vcc, 288, v0")
    a.i("v_cndmask_b32 v17, v17, v16, vcc")
    a.i(f"s_mul_i32 s36, s2, {32*1152}")
    for r in range(32):
        a.i(f"buffer_load_dword v{WD+r}, v17, s[{sD}:{sD+3}], s36 offen")
        if r != 31:
            a.i("s_add_u32 s36, s36, 1152")
    a.i("s_waitcnt vmcnt(41)")
    layernorm(a, X, [], 18, 19, 20, 21)
    a.i("v_lshlrev_b32 v7, 1, v2")
    for i in range(9):
        a.i(f"ds_write_b16_d16_hi v7, v{X[i]} offset:{128*i}")
    a.i("v_lshlrev_b32 v4, 1, v4")
    a.i("s_waitcnt lgkmcnt(0)")
    for t in range(9):
        a.i(f"ds_read_u16 v{X[t]}, v4 offset:{2*t}")
    for e in range(8):
        a.i(f"v_mov_b32 v{O[e]}, 0")
    a.i("s_waitcnt lgkmcnt(0)")
    for t in range(9):
        a.i(f"v_lshlrev_b32 v18, 16, v{X[t]}")
        a.i(f"s_waitcnt vmcnt({32 + 8 - t})")
        for d in range(4):
            a.i(f"v_dot2c_f32_bf16 v{O[2*d]}, v{WG+4*t+d}, v{X[t]}")
            a.i(f"v_dot2c_f32_bf16 v{O[2*d+1]}, v{WG+4*t+d}, v18")
    for e in range(8):
        a.i(f"v_add_f32_dpp v{O[e]}, v{O[e]}, v{O[e]} row_ror:4 row_mask:0xf bank_mask:0xf")
    for e in range(8):
        a.i(f"v_add_f32_dpp v{O[e]}, v{O[e]}, v{O[e]} row_ror:8 row_mask:0xf bank_mask:0xf")
    c0, c1 = reduce8_rows(a, O)
    a.i("v_lshlrev_b32 v18, 5, v6")
    a.i("v_lshrrev_b32 v19, 4, v2")
    a.i("v_lshl_add_u32 v18, v19, 3, v18")
    a.i("s_lshl_b32 s36, s3, 7")
    a.i("v_add_u32 v18, s36, v18")
    a.i(f"ds_write_b64 v18, v[{c0}:{c1}] offset:2048")
    a.i("s_waitcnt lgkmcnt(0)")
    a.i("s_barrier")
    a.i("v_and_b32 v18, 31, v2")
    a.i("v_lshlrev_b32 v18, 2, v18")
    for w in range(8):
        a.i(f"ds_read_b32 v{20+w}, v18 offset:{2048+128*w}")
    a.i("s_waitcnt lgkmcnt(0)")
    a.i("v_add_f32 v20, v20, v21")
    a.i("v_add_f32 v22, v22, v23")
    a.i("v_add_f32 v20, v20, v22")
    a.i("v_add_f32 v24, v24, v25")
    a.i("v_add_f32 v26, v26, v27")
    a.i("v_add_f32 v24, v24, v26")
    bf16_round(a, 20)
    bf16_round(a, 24)
    a.i("v_mul_f32 v21, v20, v20")
    a.i("v_mul_f32 v21, v21, v20")
    a.i("v_mov_b32 v22, 0x3d372713")
    a.i("v_fma_f32 v21, v21, v22, v20")
    a.i("v_mul_f32 v21, 0xc0135761, v21")
    a.i("v_exp_f32 v21, v21")
    a.i("v_add_f32 v21, 1.0, v21")
    a.i("v_rcp_f32 v21, v21")
    a.i("v_mul_f32 v21, v21, v20")
    bf16_round(a, 21)
    a.i("v_mul_f32 v21, v21, v24")
    a.i("v_cvt_pk_bf16_f32 v21, v21, v21")
    a.i("v_and_b32 v22, 0xffff0000, v21")
    a.i("v_and_b32 v21, 0xffff, v21")
    a.i("ds_write_b32 v18, v21 offset:4096")
    a.i("ds_write_b32 v18, v22 offset:4224")
    a.i("v_mov_b32 v19, 0")
    a.i("s_waitcnt lgkmcnt(0)")
    HL = 112
    for k in range(16):
        a.i(f"ds_read_b128 v[{HL+4*k}:{HL+4*k+3}], v19 offset:{4096+16*k}")
    a.i("v_mov_b32 v10, 0")
    a.i("v_mov_b32 v11, 0")
    a.i("s_waitcnt vmcnt(0) lgkmcnt(0)")
    for r in range(32):
        a.i(f"v_dot2c_f32_bf16 v10, v{WD+r}, v{HL+r}")
        a.i(f"v_dot2c_f32_bf16 v11, v{WD+r}, v{HL+32+r}")
    a.i("s_mul_i32 s38, s2, 2304")
    a.i(f"s_add_u32 s38, s38, {WS_YD:#x}")
    a.i("v_lshlrev_b32 v3, 3, v0")
    a.i("v_mov_b32 v4, 0x7fffff00")
    a.i("v_cndmask_b32 v4, v4, v3, vcc")
    a.i(f"buffer_store_dwordx2 v[10:11], v4, s[{sW}:{sW+3}], s38 offen")
    a.label("L_mlp_end")
    a.i("s_endpgm")
    return name, 176

def build(path, nt="", ntv=None):
    a = Asm()
    ks = []
    ks.append(gen_attn(a, nt, ntv))
    ks.append(gen_oproj(a))
    ks.append(gen_reduce(a, "redh_kernel", 256, WS_YO, False))
    ks.append(gen_mlp(a))
    ks.append(gen_reduce(a, "fin_kernel", 144, WS_YD, True))
    launches = [
        "; @launch kernel=attn_kernel grid=(256,1,1) block=(512,1,1) lds=20480",
        "; @launch kernel=oproj_kernel grid=(256,1,1) block=(320,1,1) lds=1024",
        "; @launch kernel=redh_kernel grid=(9,1,1) block=(256,1,1) lds=1024",
        "; @launch kernel=mlp_kernel grid=(144,1,1) block=(512,1,1) lds=8192",
        "; @launch kernel=fin_kernel grid=(9,1,1) block=(256,1,1) lds=1024",
    ]
    s = HEADER + "\n".join(launches) + "\n" + '.amdgcn_target "amdgcn-amd-amdhsa--gfx950"\n' + a.text()
    for n, v in ks:
        s += kernel_desc(n, v)
    open(path, "w").write(s)
    print("nops inserted:", a.nops)

if __name__ == "__main__":
    m = {"nt": " nt", "def": ""}
    build(sys.argv[1], m[sys.argv[2]] if len(sys.argv) > 2 else "", m[sys.argv[3]] if len(sys.argv) > 3 else None)
```

```python
import sys
from asmlib import Asm
from gen_v1 import (NAME, HEADER, kernel_begin, kernel_desc, srd, wave_sum, rows_op, bf16_round,
                    reduce8_rows, LOG2E, SCALE, EPS, INV576)

WS_PART = 0
WS_YO = 0x40000
WS_YD = 0x50000
WS_STAMP = 0x100000
WS_SIZE = 0x200000
OOB = 0x7fff0000
SPIN_MAX = 30000

L_XN, L_XRAW, L_QP, L_QB, L_OP, L_ML = 0, 1280, 4096, 8192, 12288, 16384
L_REDO, L_H, L_REDG, L_REDF = 20480, 24576, 28672, 30720
LDS_BYTES = 32768

def ln_stats(a, xs, masked, t0, t1, t2, t3, smask):
    a.i(f"v_add_f32 v{t0}, v{xs[0]}, v{xs[1]}")
    for x in xs[2:]:
        a.i(f"v_add_f32 v{t0}, v{t0}, v{x}")
    wave_sum(a, t0, t1, t2)
    a.i(f"v_mul_f32 v{t0}, {INV576:#x}, v{t0}")
    a.i(f"v_mov_b32 v{t2}, 0")
    for x in xs:
        a.i(f"v_sub_f32 v{t1}, v{x}, v{t0}")
        if x in masked:
            a.i(f"v_cndmask_b32 v{t1}, 0, v{t1}, s[{smask}:{smask+1}]")
        a.i(f"v_fmac_f32 v{t2}, v{t1}, v{t1}")
    wave_sum(a, t2, t1, t3)
    a.i(f"v_mul_f32 v{t2}, {INV576:#x}, v{t2}")
    bf16_round(a, t0)
    bf16_round(a, t2)
    a.i(f"v_add_f32 v{t2}, {EPS:#x}, v{t2}")
    bf16_round(a, t2)
    a.i(f"v_sqrt_f32 v{t2}, v{t2}")
    bf16_round(a, t2)
    a.i(f"v_rcp_f32 v{t2}, v{t2}")

def ln_apply_pair(a, x0, x1, mean, rstd, dst):
    a.i(f"v_sub_f32 v{x0}, v{x0}, v{mean}")
    a.i(f"v_sub_f32 v{x1}, v{x1}, v{mean}")
    a.i(f"v_cvt_pk_bf16_f32 v{dst}, v{x0}, v{x1}")
    a.i(f"v_lshlrev_b32 v{x0}, 16, v{dst}")
    a.i(f"v_and_b32 v{x1}, 0xffff0000, v{dst}")
    a.i(f"v_mul_f32 v{x0}, v{x0}, v{rstd}")
    a.i(f"v_mul_f32 v{x1}, v{x1}, v{rstd}")
    a.i(f"v_cvt_pk_bf16_f32 v{dst}, v{x0}, v{x1}")

def gen(path, stamps=False, pol=" nt", polw=" nt"):
    a = Asm()
    name = NAME + "_kernel"
    kernel_begin(a, name)
    Q = [4, 5, 6, 7]
    O = list(range(8, 16))
    M, L = 16, 17
    A = list(range(18, 26))
    T = list(range(26, 40))
    KB = [40, 72]
    VB = [104, 136]
    WQ = 168
    WO = 168
    WG = 200
    WD = [VB[0] + r for r in range(16)] + [KB[1] + r for r in range(16)]
    X = list(range(240, 250))
    VCNT = 250
    VZERO = 251
    VLANE4 = 3
    sK, sV, sQ, sX, sWS, sO, sG, sD, sOUT, sDBG = 28, 32, 36, 40, 44, 48, 52, 56, 60, 64
    HEAD, SPLIT, ROLE, RIDX = 68, 69, 70, 71
    SO = 72
    CNT, sLOG2E, sSCALE, sMASK = 76, 77, 78, 79
    LT32 = 80
    t0, t1, t2, t3 = 82, 83, 84, 85
    PLO, PHI = 86, 87
    ST = 88
    nst = [0]
    def stamp():
        if stamps:
            k = nst[0]; nst[0] += 1
            a.i(f"s_memrealtime s[100:101]")
            a.i("s_waitcnt lgkmcnt(0)")
            a.i(f"s_mov_b32 s{ST+k}, s100")
    def R(s): return f"s[{s}:{s+3}]"

    a.i("s_cmp_ge_u32 s2, 256")
    a.i("s_cbranch_scc1 L_end")
    a.i("s_load_dwordx16 s[4:19], s[0:1], 0")
    a.i("s_load_dwordx8 s[20:27], s[0:1], 64")
    a.i("v_lshrrev_b32 v1, 6, v0")
    a.i("v_and_b32 v2, 63, v0")
    a.i("v_readfirstlane_b32 s3, v1")
    a.i(f"s_and_b32 s{HEAD}, s2, 31")
    a.i(f"s_lshr_b32 s{SPLIT}, s2, 5")
    a.i(f"s_lshl_b32 s{t0}, s{HEAD}, 22")
    a.i(f"s_lshl_b32 s{t1}, s{SPLIT}, 19")
    a.i(f"s_add_u32 s{t0}, s{t0}, s{t1}")
    a.i(f"v_cmp_gt_u32 s[{LT32}:{LT32+1}], 32, v2")
    a.i(f"v_lshlrev_b32 v{VLANE4}, 2, v2")
    a.i(f"v_mov_b32 v{VZERO}, 0")
    a.i(f"s_mov_b32 s{ROLE}, 0")
    a.i(f"s_mov_b32 s{RIDX}, s2")
    a.i("s_cmp_ge_u32 s2, 72")
    a.i(f"s_cselect_b32 s{ROLE}, 1, s{ROLE}")
    a.i("s_cmp_ge_u32 s2, 216")
    a.i(f"s_cselect_b32 s{ROLE}, 2, s{ROLE}")
    a.i("s_cmp_ge_u32 s2, 252")
    a.i(f"s_cselect_b32 s{ROLE}, 3, s{ROLE}")
    a.i(f"s_sub_u32 s{t1}, s2, 72")
    a.i(f"s_and_b32 s{t2}, s{t1}, 7")
    a.i(f"s_mul_i32 s{t2}, s{t2}, 18")
    a.i(f"s_lshr_b32 s{t1}, s{t1}, 3")
    a.i(f"s_add_u32 s{t1}, s{t1}, s{t2}")
    a.i(f"s_cmp_eq_u32 s{ROLE}, 1")
    a.i(f"s_cselect_b32 s{RIDX}, s{t1}, s{RIDX}")
    a.i(f"s_sub_u32 s{t1}, s2, 216")
    a.i(f"s_cmp_eq_u32 s{ROLE}, 2")
    a.i(f"s_cselect_b32 s{RIDX}, s{t1}, s{RIDX}")
    a.i("s_waitcnt lgkmcnt(0)")
    stamp()
    srd(a, sX, 4, 5, 1152)
    for i in range(5):
        a.i(f"buffer_load_dword v{X[i]}, v{VLANE4}, {R(sX)}, 0 offen offset:{256*i}")
    srd(a, sWS, 26, 27, WS_SIZE)
    a.i("v_mov_b32 v4, -1")
    a.i("v_mov_b32 v5, -1")
    a.i("v_lshlrev_b32 v6, 3, v0")
    a.i(f"v_mov_b32 v7, {OOB:#x}")
    a.i("v_cmp_gt_u32 vcc, 65, v0")
    a.i("v_cndmask_b32 v8, v7, v6, vcc")
    a.i(f"s_lshl_b32 s{t1}, s2, 10")
    a.i(f"buffer_store_dwordx2 v[4:5], v8, {R(sWS)}, s{t1} offen sc1")
    a.i(f"s_and_b32 s{t1}, s2, 7")
    a.i(f"s_mul_i32 s{t1}, s{t1}, 2304")
    a.i(f"s_lshr_b32 s{t2}, s2, 3")
    a.i(f"s_lshl_b32 s{t2}, s{t2}, 8")
    a.i(f"s_add_u32 s{t1}, s{t1}, s{t2}")
    a.i(f"s_add_u32 s{t1}, s{t1}, {WS_YO:#x}")
    a.i(f"s_mul_i32 s{t2}, s{RIDX}, 2304")
    a.i(f"s_add_u32 s{t2}, s{t2}, {WS_YD:#x}")
    a.i(f"s_mov_b32 s{t3}, 0")
    a.i(f"s_cmp_eq_u32 s{ROLE}, 0")
    a.i(f"s_cselect_b32 s{t3}, 32, s{t3}")
    a.i(f"s_cmp_eq_u32 s{ROLE}, 1")
    a.i(f"s_cselect_b32 s{t3}, 288, s{t3}")
    a.i(f"s_cselect_b32 s{t1}, s{t2}, s{t1}")
    a.i(f"s_cmp_ge_u32 s{ROLE}, 2")
    a.i(f"s_cselect_b32 s{t1}, 0, s{t1}")
    a.i(f"v_cmp_gt_u32 vcc, s{t3}, v0")
    a.i("v_cndmask_b32 v8, v7, v6, vcc")
    a.i(f"buffer_store_dwordx2 v[4:5], v8, {R(sWS)}, s{t1} offen sc1")
    srd(a, sQ, 10, 11, 576 * 8192)
    a.i("v_lshrrev_b32 v26, 4, v2")
    a.i("v_and_b32 v27, 15, v2")
    a.i("v_mul_u32_u24 v28, 18, v26")
    a.i(f"s_mul_i32 s{t1}, s3, 72")
    a.i(f"v_add_u32 v28, s{t1}, v28")
    a.i("v_lshlrev_b32 v29, 13, v28")
    a.i("v_lshl_add_u32 v29, v27, 4, v29")
    a.i(f"s_lshl_b32 s{t1}, s{HEAD}, 8")
    for t in range(18):
        a.i(f"buffer_load_dwordx4 v[{WQ+4*t}:{WQ+4*t+3}], v29, {R(sQ)}, s{t1} offen")
        if t != 17:
            a.i(f"s_add_u32 s{t1}, s{t1}, 8192")
    a.i(f"s_add_u32 s6, s6, s{t0}")
    a.i("s_addc_u32 s7, s7, 0")
    a.i(f"s_add_u32 s8, s8, s{t0}")
    a.i("s_addc_u32 s9, s9, 0")
    srd(a, sK, 6, 7, 512 * 1024)
    srd(a, sV, 8, 9, 512 * 1024)
    a.i("v_lshlrev_b32 v1, 13, v1")
    a.i("v_lshl_add_u32 v1, v2, 4, v1")
    def loads(buf, srdreg, sA):
        for t in range(8):
            so = sA if t < 4 else sA + 1
            a.i(f"buffer_load_dwordx4 v[{buf+4*t}:{buf+4*t+3}], v1, {R(srdreg)}, s{so} offen offset:{(t&3)*1024}{pol}")
    a.i(f"s_mov_b32 s{SO}, 0")
    a.i(f"s_mov_b32 s{SO+1}, 4096")
    a.i(f"s_mov_b32 s{SO+2}, 0x10000")
    a.i(f"s_mov_b32 s{SO+3}, 0x11000")
    loads(KB[0], sK, SO)
    loads(VB[0], sV, SO)
    loads(KB[1], sK, SO + 2)
    loads(VB[1], sV, SO + 2)
    srd(a, sO, 12, 13, 4096 * 1152)
    a.i("s_cmp_ge_u32 s3, 4")
    a.i("s_cselect_b32 s16, s18, s16")
    a.i("s_cselect_b32 s17, s19, s17")
    srd(a, sG, 16, 17, 576 * 9216)
    srd(a, sD, 20, 21, 4608 * 1152)
    a.i(f"s_cmp_eq_u32 s{ROLE}, 1")
    a.i(f"s_cselect_b32 s{sG+2}, s{sG+2}, 0")
    a.i(f"s_cselect_b32 s{sD+2}, s{sD+2}, 0")
    srd(a, sOUT, 22, 23, 1152)
    srd(a, sDBG, 24, 25, 256)
    a.i(f"s_mov_b32 s{sLOG2E}, {LOG2E:#x}")
    a.i(f"s_mov_b32 s{sSCALE}, {SCALE:#x}")
    a.i(f"s_mov_b32 s{sMASK}, 0xffff0000")
    a.i(f"s_mov_b32 s{PLO}, 0x05040100")
    a.i(f"s_mov_b32 s{PHI}, 0x07060302")
    a.i("s_waitcnt vmcnt(52)")
    for i in range(5):
        a.i(f"ds_write_b32 v{VLANE4}, v{X[i]} offset:{L_XRAW+256*i}")
        a.i(f"v_and_b32 v{X[5+i]}, 0xffff0000, v{X[i]}")
        a.i(f"v_lshlrev_b32 v{X[i]}, 16, v{X[i]}")
    ln_stats(a, X, [X[4], X[9]], T[4], T[5], T[6], T[7], LT32)
    for i in range(5):
        ln_apply_pair(a, X[i], X[5+i], T[4], T[6], T[8])
        a.i(f"ds_write_b32 v{VLANE4}, v{T[8]} offset:{L_XN+256*i}")
    a.i("v_lshlrev_b32 v28, 1, v28")
    a.i("s_waitcnt lgkmcnt(0)")
    for i in range(9):
        a.i(f"ds_read_b32 v{X[i]}, v28 offset:{L_XN+4*i}")
    for e in range(8):
        a.i(f"v_mov_b32 v{O[e]}, 0")
    a.i("s_waitcnt lgkmcnt(0)")
    for t in range(18):
        xr = X[t // 2]
        if t % 2 == 0:
            a.i(f"v_and_b32 v{T[8]}, 0xffff, v{xr}")
            a.i(f"v_lshlrev_b32 v{T[9]}, 16, v{xr}")
        else:
            a.i(f"v_lshrrev_b32 v{T[8]}, 16, v{xr}")
            a.i(f"v_and_b32 v{T[9]}, 0xffff0000, v{xr}")
        a.i(f"s_waitcnt vmcnt({32 + 17 - t})")
        for d in range(4):
            a.i(f"v_dot2c_f32_bf16 v{O[2*d]}, v{WQ+4*t+d}, v{T[8]}")
            a.i(f"v_dot2c_f32_bf16 v{O[2*d+1]}, v{WQ+4*t+d}, v{T[9]}")
    c0, c1 = reduce8_rows(a, O)
    a.i("v_lshlrev_b32 v30, 5, v27")
    a.i("v_lshl_add_u32 v30, v26, 3, v30")
    a.i(f"s_lshl_b32 s{t1}, s3, 9")
    a.i(f"v_add_u32 v{T[12]}, s{t1}, v30")
    a.i(f"ds_write_b64 v{T[12]}, v[{c0}:{c1}] offset:{L_QP}")
    a.i("s_waitcnt lgkmcnt(0)")
    a.i("s_barrier")
    a.i(f"v_lshlrev_b32 v{T[13]}, 3, v2")
    for w in range(8):
        a.i(f"ds_read_b64 v[{WQ+2*w}:{WQ+2*w+1}], v{T[13]} offset:{L_QP+512*w}")
    a.i("s_cmp_lg_u32 s3, 0")
    a.i("s_cbranch_scc1 L_nocount")
    a.i("v_mov_b32 v30, 1")
    a.i(f"v_mov_b32 v31, {OOB:#x}")
    a.i("v_cmp_eq_u32 vcc, 0, v2")
    a.i(f"v_cndmask_b32 v31, v31, v{VZERO}, vcc")
    a.i(f"buffer_atomic_add v30, v31, {R(sDBG)}, 0 offen sc1")
    a.label("L_nocount")
    a.i("s_waitcnt lgkmcnt(0)")
    for w in range(1, 8):
        a.i(f"v_add_f32 v{WQ}, v{WQ}, v{WQ+2*w}")
        a.i(f"v_add_f32 v{WQ+1}, v{WQ+1}, v{WQ+2*w+1}")
    a.i(f"v_cvt_pk_bf16_f32 v{WQ}, v{WQ}, v{WQ+1}")
    a.i(f"ds_write_b32 v{VLANE4}, v{WQ} offset:{L_QB}")
    a.i("v_lshlrev_b32 v30, 4, v27")
    a.i("s_waitcnt lgkmcnt(0)")
    a.i(f"ds_read_b128 v[{Q[0]}:{Q[3]}], v30 offset:{L_QB}")
    a.i(f"s_cmp_lg_u32 s{ROLE}, 0")
    a.i("s_cbranch_scc1 L_nowo")
    a.i(f"s_and_b32 s{t1}, s2, 7")
    a.i(f"s_lshr_b32 s{t2}, s3, 1")
    a.i(f"s_lshl_b32 s{t2}, s{t2}, 3")
    a.i(f"s_add_u32 s{t1}, s{t1}, s{t2}")
    a.i(f"s_lshl_b32 s{t1}, s{t1}, 7")
    a.i(f"s_and_b32 s{t2}, s3, 1")
    a.i(f"s_lshl_b32 s{t2}, s{t2}, 6")
    a.i(f"s_add_u32 s{t1}, s{t1}, s{t2}")
    a.i(f"s_mul_i32 s{t1}, s{t1}, 1152")
    a.i(f"s_lshr_b32 s{t2}, s2, 3")
    a.i(f"s_lshl_b32 s{t2}, s{t2}, 7")
    a.i(f"s_add_u32 s{t1}, s{t1}, s{t2}")
    a.i(f"v_mul_u32_u24 v30, {16*1152}, v26")
    a.i("v_lshl_add_u32 v30, v27, 3, v30")
    for i in range(16):
        a.i(f"buffer_load_dwordx2 v[{WO+2*i}:{WO+2*i+1}], v30, {R(sO)}, s{t1} offen offset:{(i%3)*1152}{polw}")
        if i % 3 == 2:
            a.i(f"s_add_u32 s{t1}, s{t1}, {3*1152}")
    a.label("L_nowo")
    for e in range(8):
        a.i(f"v_mov_b32 v{O[e]}, 0")
    a.i(f"v_mov_b32 v{M}, 0xff800000")
    a.i(f"v_mov_b32 v{L}, 0")
    a.i(f"s_mov_b32 s{CNT}, 0")
    a.i("s_waitcnt lgkmcnt(0)")
    stamp()

    def qk(kb):
        for d in range(4):
            for t in range(8):
                if d == 0:
                    a.i(f"v_dot2_f32_bf16 v{A[t]}, v{kb+4*t}, v{Q[0]}, 0")
                else:
                    a.i(f"v_dot2_f32_bf16 v{A[t]}, v{kb+4*t+d}, v{Q[d]}, v{A[t]}")
    def softmax():
        for t in range(4):
            a.i(f"v_add_f32_dpp v{A[t]}, v{A[t]}, v{A[t]} row_mirror row_mask:0xf bank_mask:0x3")
        for t in range(4):
            a.i(f"v_add_f32_dpp v{A[t]}, v{A[t+4]}, v{A[t+4]} row_mirror row_mask:0xf bank_mask:0xc")
        for u in range(2):
            a.i(f"v_add_f32_dpp v{A[u]}, v{A[u]}, v{A[u]} row_half_mirror row_mask:0xf bank_mask:0x5")
        for u in range(2):
            a.i(f"v_add_f32_dpp v{A[u]}, v{A[u+2]}, v{A[u+2]} row_half_mirror row_mask:0xf bank_mask:0xa")
        for u in range(2):
            a.i(f"v_add_f32_dpp v{A[u]}, v{A[u]}, v{A[u]} quad_perm:[1,0,3,2] row_mask:0xf bank_mask:0xf")
        for u in range(2):
            a.i(f"v_add_f32_dpp v{A[u]}, v{A[u]}, v{A[u]} quad_perm:[2,3,0,1] row_mask:0xf bank_mask:0xf")
        S0, S1 = A[0], A[1]
        u0, u1 = A[2], A[3]
        a.i(f"v_cvt_pk_bf16_f32 v{u0}, v{S0}, v{S1}")
        a.i(f"v_lshlrev_b32 v{S0}, 16, v{u0}")
        a.i(f"v_and_b32 v{S1}, s{sMASK}, v{u0}")
        a.i(f"v_mul_f32 v{S0}, s{sSCALE}, v{S0}")
        a.i(f"v_mul_f32 v{S1}, s{sSCALE}, v{S1}")
        a.i(f"v_cvt_pk_bf16_f32 v{u0}, v{S0}, v{S1}")
        a.i(f"v_lshlrev_b32 v{S0}, 16, v{u0}")
        a.i(f"v_and_b32 v{S1}, s{sMASK}, v{u0}")
        a.i(f"v_max3_f32 v{u0}, v{S0}, v{S1}, v{M}")
        a.i(f"v_max_f32_dpp v{u0}, v{u0}, v{u0} row_half_mirror row_mask:0xf bank_mask:0xf")
        a.i(f"v_max_f32_dpp v{u0}, v{u0}, v{u0} row_mirror row_mask:0xf bank_mask:0xf")
        a.i(f"v_sub_f32 v{u1}, v{M}, v{u0}")
        a.i(f"v_sub_f32 v{S0}, v{S0}, v{u0}")
        a.i(f"v_sub_f32 v{S1}, v{S1}, v{u0}")
        a.i(f"v_mov_b32 v{M}, v{u0}")
        a.i(f"v_mul_f32 v{u1}, s{sLOG2E}, v{u1}")
        a.i(f"v_mul_f32 v{S0}, s{sLOG2E}, v{S0}")
        a.i(f"v_mul_f32 v{S1}, s{sLOG2E}, v{S1}")
        a.i(f"v_exp_f32 v{u1}, v{u1}")
        a.i(f"v_exp_f32 v{S0}, v{S0}")
        a.i(f"v_exp_f32 v{S1}, v{S1}")
        a.i(f"v_fma_f32 v{L}, v{L}, v{u1}, v{S0}")
        for e in range(8):
            a.i(f"v_mul_f32 v{O[e]}, v{O[e]}, v{u1}")
        a.i(f"v_add_f32 v{L}, v{L}, v{S1}")
    def pv1(vb, t):
        P = A[t & 1]
        bank = t >> 1
        for d in range(4):
            a.i(f"v_lshlrev_b32 v{T[2*d]}, 16, v{vb+4*t+d}")
            a.i(f"v_and_b32 v{T[2*d+1]}, s{sMASK}, v{vb+4*t+d}")
        for e in range(8):
            a.i(f"v_fmac_f32_dpp v{O[e]}, v{P}, v{T[e]} row_newbcast:{4*bank} row_mask:0xf bank_mask:0xf")

    a.label("L_loop")
    for b in range(2):
        kb, vb = KB[b], VB[b]
        sA = SO + 2 * b
        a.i("s_waitcnt vmcnt(24)")
        qk(kb)
        a.i(f"s_add_u32 s{sA}, s{sA}, 0x20000")
        a.i(f"s_add_u32 s{sA+1}, s{sA+1}, 0x20000")
        loads(kb, sK, sA)
        softmax()
        a.i("s_waitcnt vmcnt(24)")
        for t in range(8):
            pv1(vb, t)
        loads(vb, sV, sA)
    a.i(f"s_add_u32 s{CNT}, s{CNT}, 1")
    a.i(f"s_cmp_lt_u32 s{CNT}, 3")
    a.i("s_cbranch_scc1 L_loop")
    stamp()
    a.i("v_lshrrev_b32 v34, 4, v2")
    a.i("v_and_b32 v35, 15, v2")
    a.i(f"s_and_b32 s{t1}, s3, 3")
    a.i(f"s_mul_i32 s{t1}, s{t1}, 144")
    a.i("v_mul_u32_u24 v36, 36, v34")
    a.i(f"v_add_u32 v36, s{t1}, v36")
    a.i(f"s_movk_i32 s{t1}, 9216")
    a.i(f"v_mul_lo_u32 v37, v36, s{t1}")
    a.i("v_lshl_add_u32 v37, v35, 2, v37")
    a.i("s_waitcnt vmcnt(24)")
    qk(KB[0])
    a.i(f"buffer_load_dword v{VCNT}, v{VZERO}, {R(sDBG)}, 0 offen sc1")
    a.i(f"s_lshl_b32 s{t1}, s{RIDX}, 6")
    for i in range(36):
        a.i(f"buffer_load_dword v{WG+i}, v37, {R(sG)}, s{t1} offen{polw}")
        if i != 35:
            a.i(f"s_add_u32 s{t1}, s{t1}, 9216")
    softmax()
    a.i("s_waitcnt vmcnt(53)")
    for t in range(8):
        pv1(VB[0], t)
    a.i("v_lshlrev_b32 v37, 2, v0")
    a.i(f"v_mov_b32 v{X[0]}, {OOB:#x}")
    a.i("v_cmp_gt_u32 vcc, 288, v0")
    a.i(f"v_cndmask_b32 v37, v{X[0]}, v37, vcc")
    a.i(f"s_mul_i32 s{t2}, s{RIDX}, {32*1152}")
    def down_loads(r0, r1):
        for r in range(r0, r1):
            a.i(f"buffer_load_dword v{WD[r]}, v37, {R(sD)}, s{t2} offen offset:{(r%2)*1152}{polw}")
            if r % 2 == 1:
                a.i(f"s_add_u32 s{t2}, s{t2}, 2304")
    down_loads(0, 16)
    a.i("s_waitcnt vmcnt(61)")
    qk(KB[1])
    softmax()
    a.i(f"v_add_f32_dpp v{L}, v{L}, v{L} row_half_mirror row_mask:0xf bank_mask:0xf")
    a.i(f"v_add_f32_dpp v{L}, v{L}, v{L} row_mirror row_mask:0xf bank_mask:0xf")
    a.i(f"v_mov_b32 v{A[4]}, v{M}")
    rows_op(a, "v_max_f32", A[4], A[5])
    a.i(f"v_sub_f32 v{A[6]}, v{M}, v{A[4]}")
    a.i(f"v_mul_f32 v{A[6]}, s{sLOG2E}, v{A[6]}")
    a.i(f"v_exp_f32 v{A[6]}, v{A[6]}")
    a.i(f"v_mul_f32 v{L}, v{L}, v{A[6]}")
    rows_op(a, "v_add_f32", L, A[5])
    a.i(f"v_mov_b32 v{A[5]}, v{L}")
    a.i(f"s_lshl_b32 s{t1}, s3, 3")
    a.i(f"v_mov_b32 v30, s{t1}")
    a.i(f"ds_write_b64 v30, v[{A[4]}:{A[5]}] offset:{L_ML}")
    a.i("s_waitcnt lgkmcnt(0)")
    a.i("s_barrier")
    ML = KB[0]
    for k in range(4):
        a.i(f"ds_read_b128 v[{ML+4*k}:{ML+4*k+3}], v{VZERO} offset:{L_ML+16*k}")
    a.i("s_waitcnt lgkmcnt(0)")
    a.i(f"v_max3_f32 v{A[4]}, v{ML}, v{ML+2}, v{ML+4}")
    a.i(f"v_max3_f32 v{A[4]}, v{A[4]}, v{ML+6}, v{ML+8}")
    a.i(f"v_max3_f32 v{A[4]}, v{A[4]}, v{ML+10}, v{ML+12}")
    a.i(f"v_max_f32 v{A[4]}, v{A[4]}, v{ML+14}")
    a.i(f"v_sub_f32 v{A[6]}, v{M}, v{A[4]}")
    a.i(f"v_mul_f32 v{A[6]}, s{sLOG2E}, v{A[6]}")
    a.i(f"v_exp_f32 v{A[6]}, v{A[6]}")
    for w in range(8):
        a.i(f"v_sub_f32 v{ML+2*w}, v{ML+2*w}, v{A[4]}")
    for w in range(8):
        a.i(f"v_mul_f32 v{ML+2*w}, s{sLOG2E}, v{ML+2*w}")
    for w in range(8):
        a.i(f"v_exp_f32 v{ML+2*w}, v{ML+2*w}")
    a.i(f"v_mul_f32 v{A[5]}, v{ML}, v{ML+1}")
    for w in range(1, 8):
        a.i(f"v_fmac_f32 v{A[5]}, v{ML+2*w}, v{ML+2*w+1}")
    a.i(f"v_min_u32 v{A[4]}, 0xfffffffe, v{A[4]}")
    a.i(f"v_min_u32 v{A[5]}, 0xfffffffe, v{A[5]}")
    a.i("v_mov_b32 v30, 512")
    a.i("v_cmp_eq_u32 vcc, 64, v0")
    a.i(f"v_cndmask_b32 v30, v{X[0]}, v30, vcc")
    a.i(f"s_lshl_b32 s{t1}, s2, 10")
    a.i(f"buffer_store_dwordx2 v[{A[4]}:{A[5]}], v30, {R(sWS)}, s{t1} offen sc1")
    for e in range(8):
        a.i(f"v_mul_f32 v{O[e]}, v{O[e]}, v{A[6]}")
    a.i(f"v_mul_f32 v{A[0]}, v{A[0]}, v{A[6]}")
    a.i(f"v_mul_f32 v{A[1]}, v{A[1]}, v{A[6]}")
    for t in range(8):
        a.i(f"s_waitcnt vmcnt({61 - t})")
        pv1(VB[1], t)
    c0, c1 = reduce8_rows(a, O)
    a.i(f"ds_write_b64 v{T[12]}, v[{c0}:{c1}] offset:{L_OP}")
    down_loads(16, 32)
    a.i("s_waitcnt lgkmcnt(0)")
    a.i("s_barrier")
    stamp()
    a.i("s_cmp_lg_u32 s3, 0")
    a.i("s_cbranch_scc1 L_published")
    for w in range(8):
        a.i(f"ds_read_b64 v[{ML+2*w}:{ML+2*w+1}], v{T[13]} offset:{L_OP+512*w}")
    a.i("s_waitcnt lgkmcnt(0)")
    for st in (4, 2, 1):
        for w in range(st):
            a.i(f"v_add_f32 v{ML+2*w}, v{ML+2*w}, v{ML+2*(w+st)}")
            a.i(f"v_add_f32 v{ML+2*w+1}, v{ML+2*w+1}, v{ML+2*(w+st)+1}")
    a.i(f"v_min_u32 v{ML}, 0xfffffffe, v{ML}")
    a.i(f"v_min_u32 v{ML+1}, 0xfffffffe, v{ML+1}")
    a.i(f"buffer_store_dwordx2 v[{ML}:{ML+1}], v{T[13]}, {R(sWS)}, s{t1} offen sc1")
    a.label("L_published")
    a.i(f"s_cmp_eq_u32 s{ROLE}, 3")
    a.i("s_cbranch_scc1 L_fin")
    a.i(f"s_mov_b32 s{CNT}, 0")
    a.i("s_waitcnt vmcnt(50)")
    a.label("L_cntwait")
    a.i(f"v_readfirstlane_b32 s{t2}, v{VCNT}")
    a.i(f"s_cmp_eq_u32 s{t2}, 256")
    a.i("s_cbranch_scc1 L_cntok")
    a.i(f"s_add_u32 s{CNT}, s{CNT}, 1")
    a.i(f"s_cmp_gt_u32 s{CNT}, {SPIN_MAX}")
    a.i("s_cbranch_scc1 L_cntok")
    a.i("s_sleep 2")
    a.i(f"buffer_load_dword v{VCNT}, v{VZERO}, {R(sDBG)}, 0 offen sc1")
    a.i("s_waitcnt vmcnt(0)")
    a.i("s_branch L_cntwait")
    a.label("L_cntok")
    a.i(f"s_cmp_eq_u32 s{ROLE}, 1")
    a.i("s_cbranch_scc1 L_roleM")
    a.i(f"s_cmp_eq_u32 s{ROLE}, 2")
    a.i("s_cbranch_scc1 L_roleF")

    def poll(label, issue, regs, tmp, sleep=1):
        a.i(f"s_mov_b32 s{CNT}, 0")
        a.label(label)
        issue()
        a.i("s_waitcnt vmcnt(0)")
        rs = list(regs)
        a.i(f"v_max_u32 v{tmp}, v{rs[0]}, v{rs[1]}")
        k = 2
        while k < len(rs):
            if k + 1 < len(rs):
                a.i(f"v_max3_u32 v{tmp}, v{tmp}, v{rs[k]}, v{rs[k+1]}"); k += 2
            else:
                a.i(f"v_max_u32 v{tmp}, v{tmp}, v{rs[k]}"); k += 1
        a.i(f"v_cmp_eq_u32 vcc, -1, v{tmp}")
        a.i(f"s_cbranch_vccz {label}_ok")
        a.i(f"s_add_u32 s{CNT}, s{CNT}, 1")
        a.i(f"s_cmp_gt_u32 s{CNT}, {SPIN_MAX}")
        a.i(f"s_cbranch_scc1 {label}_ok")
        if sleep:
            a.i(f"s_sleep {sleep}")
        a.i(f"s_branch {label}")
        a.label(label + "_ok")

    def pair_rows(ra, rb, tmp):
        a.i(f"v_perm_b32 v{tmp}, v{rb}, v{ra}, s{PLO}")
        a.i(f"v_perm_b32 v{rb}, v{rb}, v{ra}, s{PHI}")
        a.i(f"v_mov_b32 v{ra}, v{tmp}")

    a.i("s_waitcnt vmcnt(0)")
    for ip in range(8):
        for c in range(2):
            pair_rows(WO + 4*ip + c, WO + 4*ip + 2 + c, 26)
    a.i(f"s_and_b32 s{t1}, s2, 7")
    a.i(f"s_lshr_b32 s{t2}, s3, 1")
    a.i(f"s_lshl_b32 s{t2}, s{t2}, 3")
    a.i(f"s_add_u32 s{t1}, s{t1}, s{t2}")
    a.i(f"s_lshl_b32 s{t1}, s{t1}, 10")
    a.i(f"v_mov_b32 v30, s{t1}")
    a.i(f"s_and_b32 s{t2}, s3, 1")
    a.i(f"s_lshl_b32 s{t2}, s{t2}, 8")
    a.i(f"s_add_u32 s{t2}, s{t2}, s{t1}")
    a.i(f"v_add_u32 v31, s{t2}, v{VLANE4}")
    for k in range(4):
        a.i(f"s_mov_b32 s{SO+k}, {0x8000*(k+1)}")
    a.i(f"s_mov_b32 s{t1}, {0x8000*5}")
    a.i(f"s_mov_b32 s{t2}, {0x8000*6}")
    a.i(f"s_mov_b32 s{t3}, {0x8000*7}")
    sofs = ["0"] + [f"s{SO+k}" for k in range(4)] + [f"s{t1}", f"s{t2}", f"s{t3}"]
    P = 40
    def issue_ml():
        for s in range(8):
            a.i(f"buffer_load_dwordx2 v[{P+2*s}:{P+2*s+1}], v30, {R(sWS)}, {sofs[s]} offen offset:512 sc1")
    poll("L_o_ml", issue_ml, range(P, P + 16), 26)
    a.i(f"v_max3_f32 v26, v{P}, v{P+2}, v{P+4}")
    a.i(f"v_max3_f32 v26, v26, v{P+6}, v{P+8}")
    a.i(f"v_max3_f32 v26, v26, v{P+10}, v{P+12}")
    a.i(f"v_max_f32 v26, v26, v{P+14}")
    for s in range(8):
        a.i(f"v_sub_f32 v{P+2*s}, v{P+2*s}, v26")
    for s in range(8):
        a.i(f"v_mul_f32 v{P+2*s}, s{sLOG2E}, v{P+2*s}")
    for s in range(8):
        a.i(f"v_exp_f32 v{P+2*s}, v{P+2*s}")
    a.i(f"v_mul_f32 v27, v{P}, v{P+1}")
    for s in range(1, 8):
        a.i(f"v_fmac_f32 v27, v{P+2*s}, v{P+2*s+1}")
    a.i("v_rcp_f32 v27, v27")
    for s in range(8):
        a.i(f"v_mul_f32 v{P+2*s}, v{P+2*s}, v27")
    for c in range(4):
        a.i(f"v_mov_b32 v{O[c]}, 0")
    PO = 60
    def issue_o():
        for s in range(8):
            a.i(f"buffer_load_dword v{PO+s}, v31, {R(sWS)}, {sofs[s]} offen sc1")
    poll("L_o_o", issue_o, range(PO, PO + 8), 26, sleep=0)
    stamp()
    a.i(f"v_mul_f32 v28, v{P}, v{PO}")
    a.i(f"v_mul_f32 v29, v{P+2}, v{PO+1}")
    for s in range(2, 8):
        a.i(f"v_fmac_f32 v{28 + (s & 1)}, v{P+2*s}, v{PO+s}")
    a.i("v_add_f32 v28, v28, v29")
    a.i("v_mov_b32_dpp v29, v28 quad_perm:[1,0,3,2] row_mask:0xf bank_mask:0xf")
    a.i("v_cvt_pk_bf16_f32 v28, v28, v29")
    colreg = [0, 2, 1, 3]
    for ip in range(8):
        for c in range(4):
            a.i(f"v_dot2c_f32_bf16_dpp v{O[c]}, v28, v{WO+4*ip+colreg[c]} row_newbcast:{2*ip} row_mask:0xf bank_mask:0xf")
    a.i(f"v_permlane32_swap_b32 v{O[0]}, v{O[2]}")
    a.i(f"v_permlane32_swap_b32 v{O[1]}, v{O[3]}")
    a.i(f"v_add_f32 v{O[0]}, v{O[0]}, v{O[2]}")
    a.i(f"v_add_f32 v{O[1]}, v{O[1]}, v{O[3]}")
    a.i(f"v_permlane16_swap_b32 v{O[0]}, v{O[1]}")
    a.i(f"v_add_f32 v{O[0]}, v{O[0]}, v{O[1]}")
    a.i("v_lshlrev_b32 v30, 4, v35")
    a.i("v_lshl_add_u32 v30, v34, 2, v30")
    a.i(f"s_lshl_b32 s{t1}, s3, 8")
    a.i(f"v_add_u32 v30, s{t1}, v30")
    a.i(f"ds_write_b32 v30, v{O[0]} offset:{L_REDO}")
    a.i("s_waitcnt lgkmcnt(0)")
    a.i("s_barrier")
    a.i("s_cmp_lg_u32 s3, 0")
    a.i("s_cbranch_scc1 L_fin")
    for w in range(8):
        a.i(f"ds_read_b32 v{P+w}, v{VLANE4} offset:{L_REDO+256*w}")
    a.i(f"s_and_b32 s{t1}, s2, 7")
    a.i(f"s_mul_i32 s{t1}, s{t1}, 2304")
    a.i(f"s_lshr_b32 s{t2}, s2, 3")
    a.i(f"s_lshl_b32 s{t2}, s{t2}, 8")
    a.i(f"s_add_u32 s{t1}, s{t1}, s{t2}")
    a.i(f"s_add_u32 s{t1}, s{t1}, {WS_YO:#x}")
    a.i("s_waitcnt lgkmcnt(0)")
    for st in (4, 2, 1):
        for w in range(st):
            a.i(f"v_add_f32 v{P+w}, v{P+w}, v{P+w+st}")
    a.i(f"v_min_u32 v{P}, 0xfffffffe, v{P}")
    a.i(f"buffer_store_dword v{P}, v{VLANE4}, {R(sWS)}, s{t1} offen sc1")
    stamp()
    a.i("s_branch L_fin")

    nst[0] = 4
    a.label("L_roleM")
    a.i("s_waitcnt vmcnt(0)")
    for ip in range(18):
        pair_rows(WG + 2*ip, WG + 2*ip + 1, 26)
    for ip in range(16):
        pair_rows(WD[2*ip], WD[2*ip+1], 26)
    for k in range(4):
        a.i(f"s_mov_b32 s{SO+k}, {WS_YO + 4608*k:#x}")
    a.i(f"s_lshl_b32 s{t1}, s3, 8")
    a.i(f"v_add_u32 v30, s{t1}, v{VLANE4}")
    a.i(f"v_add_u32 v31, 2048, v{VLANE4}")
    a.i(f"v_add_u32 v32, 2304, v{VLANE4}")
    a.i("s_cmp_eq_u32 s3, 0")
    a.i(f"s_cselect_b64 vcc, -1, 0")
    a.i("v_cndmask_b32 v32, v32, v31, vcc")
    a.i(f"v_cndmask_b32 v31, v{X[0]}, v31, vcc")
    a.i("v_lshrrev_b32 v33, 1, v30")
    a.i(f"ds_read_u16 v28, v33 offset:{L_XRAW}")
    a.i(f"v_lshlrev_b32 v33, 1, v2")
    a.i(f"ds_read_u16 v29, v33 offset:{L_XRAW+1024}")
    a.i("v_lshl_add_u32 v36, v35, 1, v36")
    a.i("v_lshlrev_b32 v36, 2, v36")
    for c in range(4):
        a.i(f"v_mov_b32 v{O[c]}, 0")
    a.i("s_waitcnt lgkmcnt(0)")
    a.i("v_lshlrev_b32 v28, 16, v28")
    a.i("v_lshlrev_b32 v29, 16, v29")
    def issue_yo():
        for g in range(8):
            a.i(f"buffer_load_dword v{P+g}, v30, {R(sWS)}, s{SO+g//2} offen offset:{(g%2)*2304} sc1")
        for g in range(8):
            a.i(f"buffer_load_dword v{P+8+g}, v31, {R(sWS)}, s{SO+g//2} offen offset:{(g%2)*2304} sc1")
    poll("L_m_yo", issue_yo, range(P, P + 16), 26, sleep=0)
    stamp()
    for st in (4, 2, 1):
        for w in range(st):
            a.i(f"v_add_f32 v{P+w}, v{P+w}, v{P+w+st}")
            a.i(f"v_add_f32 v{P+8+w}, v{P+8+w}, v{P+8+w+st}")
    a.i(f"v_cvt_pk_bf16_f32 v26, v{P}, v{P+8}")
    a.i("v_lshlrev_b32 v27, 16, v26")
    a.i(f"v_and_b32 v26, s{sMASK}, v26")
    a.i("v_add_f32 v28, v28, v27")
    a.i("v_add_f32 v29, v29, v26")
    a.i("v_cvt_pk_bf16_f32 v26, v28, v29")
    a.i("v_lshlrev_b32 v28, 16, v26")
    a.i(f"v_and_b32 v29, s{sMASK}, v26")
    a.i(f"ds_write_b32 v30, v28 offset:{L_H}")
    a.i(f"ds_write_b32 v32, v29 offset:{L_H}")
    a.i("s_waitcnt lgkmcnt(0)")
    a.i("s_barrier")
    for i in range(9):
        a.i(f"ds_read_b32 v{P+i}, v{VLANE4} offset:{L_H+256*i}")
    a.i(f"ds_read_b64 v[{P+10}:{P+11}], v36 offset:{L_H}")
    a.i(f"ds_read_b64 v[{P+12}:{P+13}], v36 offset:{L_H+128}")
    a.i("s_waitcnt lgkmcnt(2)")
    ln_stats(a, list(range(P, P + 9)), [], 26, 27, 28, 29, LT32)
    a.i("s_waitcnt lgkmcnt(0)")
    ln_apply_pair(a, P + 10, P + 11, 26, 28, 30)
    ln_apply_pair(a, P + 12, P + 13, 26, 28, 31)
    for ip in range(18):
        src = 30 if ip < 16 else 31
        for c in range(2):
            a.i(f"v_dot2c_f32_bf16_dpp v{O[c + 2*(ip & 1)]}, v{src}, v{WG+2*ip+c} row_newbcast:{ip & 15} row_mask:0xf bank_mask:0xf")
    a.i(f"v_add_f32 v{O[0]}, v{O[0]}, v{O[2]}")
    a.i(f"v_add_f32 v{O[1]}, v{O[1]}, v{O[3]}")
    a.i(f"v_permlane32_swap_b32 v{O[0]}, v{O[1]}")
    a.i(f"v_add_f32 v{O[0]}, v{O[0]}, v{O[1]}")
    a.i(f"v_mov_b32 v{O[1]}, v{O[0]}")
    a.i(f"v_permlane16_swap_b32 v{O[0]}, v{O[1]}")
    a.i(f"v_add_f32 v{O[0]}, v{O[0]}, v{O[1]}")
    a.i("v_lshrrev_b32 v30, 5, v2")
    a.i("v_lshl_add_u32 v30, v35, 1, v30")
    a.i("v_lshlrev_b32 v30, 2, v30")
    a.i(f"s_lshl_b32 s{t1}, s3, 7")
    a.i(f"v_add_u32 v30, s{t1}, v30")
    a.i(f"ds_write_b32 v30, v{O[0]} offset:{L_REDG}")
    a.i("v_lshlrev_b32 v30, 3, v35")
    for c in range(4):
        a.i(f"v_mov_b32 v{O[c]}, 0")
    a.i("s_waitcnt lgkmcnt(0)")
    a.i("s_barrier")
    a.i("s_cmp_gt_u32 s3, 4")
    a.i("s_cbranch_scc1 L_fin")
    for w in range(8):
        a.i(f"ds_read_b64 v[{P+2*w}:{P+2*w+1}], v30 offset:{L_REDG+128*w}")
    a.i("v_mov_b32 v33, 0x3d372713")
    a.i(f"s_mul_i32 s{t1}, s{RIDX}, 2304")
    a.i(f"s_add_u32 s{t1}, s{t1}, {WS_YD:#x}")
    a.i("v_lshlrev_b32 v32, 1, v37")
    a.i(f"v_cmp_gt_u32 vcc, 288, v0")
    a.i(f"v_cndmask_b32 v32, v{X[0]}, v32, vcc")
    a.i("s_waitcnt lgkmcnt(0)")
    for c in range(2):
        a.i(f"v_add_f32 v{P+c}, v{P+c}, v{P+2+c}")
        a.i(f"v_add_f32 v{P+4+c}, v{P+4+c}, v{P+6+c}")
        a.i(f"v_add_f32 v{P+8+c}, v{P+8+c}, v{P+10+c}")
        a.i(f"v_add_f32 v{P+12+c}, v{P+12+c}, v{P+14+c}")
    for c in range(2):
        a.i(f"v_add_f32 v{P+c}, v{P+c}, v{P+4+c}")
        a.i(f"v_add_f32 v{P+8+c}, v{P+8+c}, v{P+12+c}")
    a.i(f"v_cvt_pk_bf16_f32 v26, v{P}, v{P+1}")
    a.i(f"v_cvt_pk_bf16_f32 v27, v{P+8}, v{P+9}")
    a.i(f"v_lshlrev_b32 v{P}, 16, v26")
    a.i(f"v_and_b32 v{P+1}, s{sMASK}, v26")
    a.i(f"v_lshlrev_b32 v{P+8}, 16, v27")
    a.i(f"v_and_b32 v{P+9}, s{sMASK}, v27")
    for c in range(2):
        a.i(f"v_mul_f32 v{P+2+c}, v{P+c}, v{P+c}")
    for c in range(2):
        a.i(f"v_mul_f32 v{P+2+c}, v{P+2+c}, v{P+c}")
    for c in range(2):
        a.i(f"v_fma_f32 v{P+2+c}, v{P+2+c}, v33, v{P+c}")
    for c in range(2):
        a.i(f"v_mul_f32 v{P+2+c}, 0xc0135761, v{P+2+c}")
    for c in range(2):
        a.i(f"v_exp_f32 v{P+2+c}, v{P+2+c}")
    for c in range(2):
        a.i(f"v_add_f32 v{P+2+c}, 1.0, v{P+2+c}")
    for c in range(2):
        a.i(f"v_rcp_f32 v{P+2+c}, v{P+2+c}")
    for c in range(2):
        a.i(f"v_mul_f32 v{P+2+c}, v{P+2+c}, v{P+c}")
    a.i(f"v_cvt_pk_bf16_f32 v26, v{P+2}, v{P+3}")
    a.i(f"v_lshlrev_b32 v{P+2}, 16, v26")
    a.i(f"v_and_b32 v{P+3}, s{sMASK}, v26")
    a.i(f"v_mul_f32 v{P+2}, v{P+2}, v{P+8}")
    a.i(f"v_mul_f32 v{P+3}, v{P+3}, v{P+9}")
    a.i(f"v_cvt_pk_bf16_f32 v26, v{P+2}, v{P+3}")
    for ip in range(16):
        for c in range(2):
            a.i(f"v_dot2c_f32_bf16_dpp v{O[c + 2*(ip & 1)]}, v26, v{WD[2*ip+c]} row_newbcast:{ip} row_mask:0xf bank_mask:0xf")
    a.i(f"v_add_f32 v{O[0]}, v{O[0]}, v{O[2]}")
    a.i(f"v_add_f32 v{O[1]}, v{O[1]}, v{O[3]}")
    a.i(f"v_min_u32 v{O[0]}, 0xfffffffe, v{O[0]}")
    a.i(f"v_min_u32 v{O[1]}, 0xfffffffe, v{O[1]}")
    a.i(f"buffer_store_dwordx2 v[{O[0]}:{O[1]}], v32, {R(sWS)}, s{t1} offen sc1")
    stamp()
    a.i("s_branch L_fin")

    nst[0] = 4
    a.label("L_roleF")
    for k in range(4):
        a.i(f"s_mov_b32 s{SO+k}, {WS_YO + 4608*k:#x}")
    a.i(f"s_lshl_b32 s{t1}, s{RIDX}, 6")
    a.i(f"v_lshlrev_b32 v30, 2, v35")
    a.i(f"v_add_u32 v30, s{t1}, v30")
    a.i("v_lshrrev_b32 v33, 1, v30")
    a.i(f"ds_read_u16 v28, v33 offset:{L_XRAW}")
    a.i("v_lshrrev_b32 v31, 2, v0")
    a.i("v_mul_u32_u24 v31, 2304, v31")
    a.i("v_and_b32 v32, 3, v0")
    a.i("v_lshl_add_u32 v31, v32, 4, v31")
    a.i(f"v_add_u32 v31, s{t1}, v31")
    a.i(f"v_add_u32 v32, {128*2304}, v31")
    a.i("v_cmp_gt_u32 vcc, 64, v0")
    a.i(f"v_cndmask_b32 v32, v{X[0]}, v32, vcc")
    a.i(f"s_mov_b32 s{t2}, {WS_YD:#x}")
    def issue_yo_f():
        for g in range(8):
            a.i(f"buffer_load_dword v{P+g}, v30, {R(sWS)}, s{SO+g//2} offen offset:{(g%2)*2304} sc1")
    poll("L_f_yo", issue_yo_f, range(P, P + 8), 26, sleep=1)
    stamp()
    for st in (4, 2, 1):
        for w in range(st):
            a.i(f"v_add_f32 v{P+w}, v{P+w}, v{P+w+st}")
    bf16_round(a, P)
    a.i("s_waitcnt lgkmcnt(0)")
    a.i("v_lshlrev_b32 v28, 16, v28")
    a.i(f"v_add_f32 v28, v28, v{P}")
    bf16_round(a, 28)
    def issue_yd():
        a.i(f"buffer_load_dwordx4 v[{P}:{P+3}], v31, {R(sWS)}, s{t2} offen sc1")
        a.i(f"buffer_load_dwordx4 v[{P+4}:{P+7}], v32, {R(sWS)}, s{t2} offen sc1")
    poll("L_f_yd", issue_yd, range(P, P + 8), 26, sleep=0)
    stamp()
    for c in range(4):
        a.i(f"v_add_f32 v{P+c}, v{P+c}, v{P+4+c}")
    for c in range(4):
        a.i(f"v_add_f32_dpp v{P+c}, v{P+c}, v{P+c} row_ror:4 row_mask:0xf bank_mask:0xf")
    for c in range(4):
        a.i(f"v_add_f32_dpp v{P+c}, v{P+c}, v{P+c} row_ror:8 row_mask:0xf bank_mask:0xf")
    a.i(f"v_permlane32_swap_b32 v{P}, v{P+2}")
    a.i(f"v_permlane32_swap_b32 v{P+1}, v{P+3}")
    a.i(f"v_add_f32 v{P}, v{P}, v{P+2}")
    a.i(f"v_add_f32 v{P+1}, v{P+1}, v{P+3}")
    a.i(f"v_permlane16_swap_b32 v{P}, v{P+1}")
    a.i(f"v_add_f32 v{P}, v{P}, v{P+1}")
    a.i("v_and_b32 v30, 3, v2")
    a.i("v_lshlrev_b32 v30, 4, v30")
    a.i("v_lshl_add_u32 v30, v34, 2, v30")
    a.i(f"s_lshl_b32 s{t1}, s3, 6")
    a.i(f"v_add_u32 v30, s{t1}, v30")
    a.i(f"ds_write_b32 v30, v{P} offset:{L_REDF}")
    a.i("v_lshlrev_b32 v30, 2, v35")
    a.i("s_waitcnt lgkmcnt(0)")
    a.i("s_barrier")
    a.i("s_cmp_lg_u32 s3, 0")
    a.i("s_cbranch_scc1 L_fin")
    for w in range(8):
        a.i(f"ds_read_b32 v{P+w}, v30 offset:{L_REDF+64*w}")
    a.i("v_cmp_gt_u32 vcc, 16, v2")
    a.i(f"v_cndmask_b32 v33, v{X[0]}, v33, vcc")
    a.i("s_waitcnt lgkmcnt(0)")
    for st in (4, 2, 1):
        for w in range(st):
            a.i(f"v_add_f32 v{P+w}, v{P+w}, v{P+w+st}")
    bf16_round(a, P)
    a.i(f"v_add_f32 v28, v28, v{P}")
    a.i("v_cvt_pk_bf16_f32 v28, v28, v28")
    a.i(f"buffer_store_short v28, v33, {R(sOUT)}, 0 offen")
    stamp()
    a.label("L_fin")
    if stamps:
        a.i("s_cmp_lg_u32 s3, 0")
        a.i("s_cbranch_scc1 L_end")
        for k in range(8):
            a.i(f"v_mov_b32 v{40+k}, s{ST+k}")
        a.i(f"s_lshl_b32 s{t1}, s2, 6")
        a.i(f"s_add_u32 s{t1}, s{t1}, {WS_STAMP:#x}")
        a.i(f"buffer_store_dwordx4 v[40:43], v{VZERO}, {R(sWS)}, s{t1} offen")
        a.i(f"buffer_store_dwordx4 v[44:47], v{VZERO}, {R(sWS)}, s{t1} offen offset:16")
    a.label("L_end")
    a.i("s_endpgm")
    s = HEADER + f"; @launch grid=(256,1,1) block=(512,1,1) lds={LDS_BYTES}\n" + '.amdgcn_target "amdgcn-amd-amdhsa--gfx950"\n' + a.text() + kernel_desc(name, 252)
    open(path, "w").write(s)
    print(path, "nops inserted:", a.nops)

if __name__ == "__main__":
    gen("v2.s")
    gen("v2_st.s", stamps=True)
```
